```python
import torch

def _softmax(x, axis=-1):
    return torch.softmax(x, dim=axis)
def _gelu(x):
    return torch.nn.functional.gelu(x, approximate="tanh")
def _silu(x):
    return torch.nn.functional.silu(x)
def _sigmoid(x):
    return torch.sigmoid(x)
def _layernorm(x, axis=-1, eps=1e-5):
    m = x.mean(dim=axis, keepdim=True)
    v = x.var(dim=axis, keepdim=True, unbiased=False)
    return (x - m) / torch.sqrt(v + eps)
def _scatter_add(tgt, idx, src, axis=0):
    return tgt.clone().index_add_(axis, idx, src)
def _segment_sum(src, seg, n):
    out = torch.zeros((n,) + src.shape[1:], dtype=src.dtype)
    return out.index_add_(0, seg, src)
def _pad(x, pw):
    flat = tuple(v for pair in reversed(pw) for v in pair)
    return torch.nn.functional.pad(x, flat)

kernel_name = 'gated_mix__softmax_full_mha__dense_activation_mish__prompt'

def setup_inputs():

    _w = (lambda a: (lambda t: t.to(torch.bfloat16) if t.is_floating_point() else t)(torch.as_tensor(a)))
    def _A_setup():
        B, S, D = 1, 2048, 512
        return {
            "x": _w((lambda *s: torch.randn(*s, dtype=torch.bfloat16) * 0.05)(B, S, D)),
            "wqkv": _w((lambda *s: torch.randn(*s, dtype=torch.bfloat16) * 0.8)(D, 3 * D)),
            "wo": _w((lambda *s: torch.randn(*s, dtype=torch.bfloat16) * 0.05)(D, D)),
        }
    _A_in = _A_setup()

    def _B_setup():
        B, S, D, F = 1, 2048, 512, 1376
        return {
            "x": _w((lambda *s: torch.randn(*s, dtype=torch.bfloat16) * 0.05)(B, S, D)),
            "w1": _w((lambda *s: torch.randn(*s, dtype=torch.bfloat16) * 12.8)(D, F) * (D ** -0.5)),
            "b1": _w((lambda *s: torch.randn(*s, dtype=torch.bfloat16) * 0.2)(F)),
            "w2": _w((lambda *s: torch.randn(*s, dtype=torch.bfloat16) * 0.1)(F, D) * (F ** -0.5)),
        }
    _B_in = _B_setup()

    return {
        "A_x": _A_in["x"],
        "A_wqkv": _A_in["wqkv"],
        "A_wo": _A_in["wo"],
        "B_x": _B_in["x"],
        "B_w1": _B_in["w1"],
        "B_b1": _B_in["b1"],
        "B_w2": _B_in["w2"],
        "gate_w": _w((lambda *s: torch.randn(*s, dtype=torch.bfloat16) * 0.05)(512) * 16.0),
    }

def reference(A_x, A_wqkv, A_wo, B_x, B_w1, B_b1, B_w2, gate_w):
    def _A_ref(x, wqkv, wo):
        B, S, D = x.shape
        H = 32; Dh = D // H
        qkv = (lambda x, *d: x.permute(*d))((x @ wqkv).reshape(B, S, 3, H, Dh), 2, 0, 3, 1, 4)
        q, k, v = qkv[0], qkv[1], qkv[2]
        scale = Dh ** -0.5
        scores = torch.einsum("bhqd,bhkd->bhqk", q, k) * scale
        p = _softmax(scores, axis=-1)
        o = torch.einsum("bhqk,bhkd->bhqd", p, v)
        return (lambda x, *d: x.permute(*d))(o, 0, 2, 1, 3).reshape(B, S, D) @ wo

    def _B_ref(x, w1, b1, w2):
        h = torch.einsum("bsd,df->bsf", x, w1) + b1
        sp = torch.log1p(torch.exp(-torch.abs(h))) + torch.where(h > 0, h, torch.zeros_like(h))
        act = h * torch.tanh(sp)
        return torch.einsum("bsf,fd->bsd", act, w2)

    x = A_x
    g = _sigmoid((x * gate_w).sum(-1, keepdims=True))
    a = _A_ref(x, A_wqkv, A_wo)
    b = _B_ref(x, B_w1, B_b1, B_w2)
    return g * a + (1 - g) * b
```

```python
import sys, math

NAME = "gated_mix__softmax_full_mha__dense_activation_mish__prompt"
OUT = f"cdna_kernels/{NAME}.s"

WS_Q   = 0
WS_K   = 2 << 20
WS_V   = 4 << 20
WS_O   = 6 << 20
WS_ACT = 8 << 20
WS_G   = 14 << 20
WS_B   = 15 << 20
WS_SIZE = 18 << 20

LOG2E = 1.4426950408889634
QSCALE = 0.25 * LOG2E

def f32bits(x):
    import struct
    return struct.unpack("<I", struct.pack("<f", x))[0]

class Asm:
    def __init__(self):
        self.lines = []
    def __call__(self, s):
        self.lines.append("    " + s)
    def label(self, s):
        self.lines.append(s + ":")
    def raw(self, s):
        self.lines.append(s)
    def comment(self, s):
        self.lines.append("    ; " + s)
    def text(self):
        return "\n".join(self.lines) + "\n"

def vr(a, n=1):
    return f"v{a}" if n == 1 else f"v[{a}:{a+n-1}]"
def sr(a, n=1):
    return f"s{a}" if n == 1 else f"s[{a}:{a+n-1}]"

def kernel_start(E, name):
    E.raw(f".globl {name}")
    E.raw(".p2align 8")
    E.raw(f".type {name},@function")
    E.label(name)

def kernel_desc(name, vgpr, sgpr=102):
    acc = (vgpr + 3) // 4 * 4
    return f""".p2align 6
.amdhsa_kernel {name}
  .amdhsa_next_free_vgpr {vgpr}
  .amdhsa_next_free_sgpr {sgpr}
  .amdhsa_accum_offset {acc}
  .amdhsa_group_segment_fixed_size 0
  .amdhsa_kernarg_size 88
  .amdhsa_user_sgpr_count 2
  .amdhsa_user_sgpr_kernarg_segment_ptr 1
  .amdhsa_system_sgpr_workgroup_id_x 1
.end_amdhsa_kernel
"""

def make_srd(E, d, base, size):
    E(f"s_mov_b32 s{d}, s{base}")
    E(f"s_and_b32 s{d+1}, s{base+1}, 0xffff")
    E(f"s_mov_b32 s{d+2}, {size}")
    E(f"s_mov_b32 s{d+3}, 0x00020000")

def gen_k1(E):
    name = "k1_proj_kernel"
    kernel_start(E, name)
    SLOT = 40960; XB = 16384
    NST = 8
    S_X, S_W, S_WS, S_B1, S_GW = 20, 24, 28, 32, 36
    sW, sMT, sNT, sRS, sN0, sT0, sT1, sT2 = 40, 41, 42, 43, 44, 45, 46, 47
    sXM0, sWM0, sWSTEP, sCOL, sISF = 48, 49, 50, 51, 52
    vLANE = 1
    vXD = 8
    vWD = 10
    vXA = 13
    vWA = 17
    vG = 20
    vBIAS = 24
    vXF = 48
    vWF = 56
    vACC = 80
    E("s_cmp_ge_u32 s2, 256")
    E("s_cbranch_scc1 K1_END")
    E("s_load_dwordx4 s[4:7], s[0:1], 0")
    E("s_load_dwordx4 s[8:11], s[0:1], 32")
    E("s_load_dwordx2 s[12:13], s[0:1], 56")
    E("s_load_dwordx2 s[14:15], s[0:1], 80")
    E(f"v_and_b32 v{vLANE}, 63, v0")
    E("v_lshrrev_b32 v2, 6, v0")
    E("s_nop 0")
    E(f"v_readfirstlane_b32 s{sW}, v2")
    E(f"s_and_b32 s{sT0}, s2, 7")
    E(f"s_lshr_b32 s{sT1}, s2, 3")
    E(f"s_and_b32 s{sMT}, s{sT0}, 1")
    E(f"s_lshl_b32 s{sMT}, s{sMT}, 3")
    E(f"s_and_b32 s{sT2}, s{sT1}, 7")
    E(f"s_add_u32 s{sMT}, s{sMT}, s{sT2}")
    E(f"s_lshr_b32 s{sNT}, s{sT0}, 1")
    E(f"s_lshl_b32 s{sNT}, s{sNT}, 2")
    E(f"s_lshr_b32 s{sT2}, s{sT1}, 3")
    E(f"s_add_u32 s{sNT}, s{sNT}, s{sT2}")
    E("s_waitcnt lgkmcnt(0)")
    make_srd(E, S_X, 4, 2048 * 1024)
    make_srd(E, S_WS, 14, WS_SIZE)
    make_srd(E, S_B1, 10, 1376 * 2)
    make_srd(E, S_GW, 12, 1024)
    E(f"s_cmp_ge_u32 s{sNT}, 8")
    E(f"s_cselect_b32 s{sISF}, 1, 0")
    E(f"s_cselect_b32 s{S_W}, s8, s6")
    E(f"s_cselect_b32 s{sT0}, s9, s7")
    E(f"s_mov_b32 s{sT1}, 3072")
    E(f"s_cselect_b32 s{sRS}, 2752, s{sT1}")
    E(f"s_and_b32 s{S_W+1}, s{sT0}, 0xffff")
    E(f"s_lshl_b32 s{S_W+2}, s{sRS}, 9")
    E(f"s_mov_b32 s{S_W+3}, 0x00020000")
    E(f"s_and_b32 s{sT0}, s{sNT}, 7")
    E(f"s_mul_i32 s{sN0}, s{sT0}, 192")
    E(f"s_lshl_b32 s{sWSTEP}, s{sRS}, 6")
    E(f"s_lshl_b32 s{sT0}, s2, 3")
    E(f"s_add_u32 s{sT0}, s{sT0}, s{sW}")
    E(f"s_lshl_b32 s{sT0}, s{sT0}, 10")
    E(f"v_lshlrev_b32 v2, 4, v{vLANE}")
    E(f"buffer_load_dwordx4 v[{vACC}:{vACC+3}], v2, s[{S_X}:{S_X+3}], s{sT0} offen")
    E(f"buffer_load_dwordx4 v[{vACC+4}:{vACC+7}], v2, s[{S_GW}:{S_GW+3}], 0 offen")
    E(f"s_lshr_b32 s{sT0}, s{sW}, 2")
    E(f"s_mul_i32 s{sT0}, s{sT0}, 96")
    E(f"s_add_u32 s{sCOL}, s{sN0}, s{sT0}")
    E(f"v_lshrrev_b32 v2, 5, v{vLANE}")
    E(f"v_lshlrev_b32 v3, 3, v2")
    E(f"s_lshl_b32 s{sT0}, s{sCOL}, 1")
    for b in range(3):
        for g in range(2):
            for e in range(2):
                idx = (b * 4 + g * 2 + e) * 2
                off = (32 * b + 16 * g + 8 * e) * 2
                E(f"buffer_load_dwordx2 v[{vBIAS+idx}:{vBIAS+idx+1}], v3, s[{S_B1}:{S_B1+3}], s{sT0} offen offset:{off}")
    for t in range(2):
        E(f"s_lshl_b32 s{sT0}, s{sW}, 4")
        E(f"s_add_u32 s{sT0}, s{sT0}, {8*t}")
        E(f"v_lshrrev_b32 v2, 3, v{vLANE}")
        E(f"v_add_u32 v2, s{sT0}, v2")
        E(f"v_lshrrev_b32 v3, 1, v2")
        E(f"v_and_b32 v3, 7, v3")
        E(f"v_and_b32 v4, 7, v{vLANE}")
        E(f"v_xor_b32 v3, v3, v4")
        E(f"s_lshl_b32 s{sT0}, s{sMT}, 7")
        E(f"v_add_u32 v2, s{sT0}, v2")
        E(f"v_lshlrev_b32 v2, 10, v2")
        E(f"v_lshl_add_u32 v{vXD+t}, v3, 4, v2")
    for t in range(3):
        E(f"s_mul_i32 s{sT0}, s{sW}, 192")
        E(f"s_add_u32 s{sT0}, s{sT0}, {64*t}")
        E(f"v_add_u32 v2, s{sT0}, v{vLANE}")
        E(f"v_mul_u32_u24 v3, 2731, v2")
        E(f"v_lshrrev_b32 v3, 16, v3")
        E(f"v_mul_u32_u24 v4, 24, v3")
        E(f"v_sub_u32 v4, v2, v4")
        E(f"v_lshlrev_b32 v5, 1, v3")
        E(f"v_and_b32 v5, 4, v5")
        E(f"v_xor_b32 v4, v4, v5")
        E(f"v_mul_lo_u32 v3, v3, s{sRS}")
        E(f"v_lshl_add_u32 v3, v4, 4, v3")
        E(f"s_lshl_b32 s{sT0}, s{sN0}, 1")
        E(f"v_add_u32 v{vWD+t}, s{sT0}, v3")
    E(f"s_lshl_b32 s{sXM0}, s{sW}, 11")
    E(f"s_mul_i32 s{sWM0}, s{sW}, 3072")
    E(f"s_add_u32 s{sWM0}, s{sWM0}, {XB}")

    def issue_stage(st):
        slot = st % 4
        E(f"s_mov_b32 s{sT0}, {st*128}")
        for t in range(2):
            E(f"s_add_u32 m0, s{sXM0}, {slot*SLOT + t*1024}")
            E("s_nop 0")
            E(f"buffer_load_dwordx4 v{vXD+t}, s[{S_X}:{S_X+3}], s{sT0} offen lds")
        E(f"s_mul_i32 s{sT0}, s{sWSTEP}, {st}")
        for t in range(3):
            E(f"s_add_u32 m0, s{sWM0}, {slot*SLOT + t*1024}")
            E("s_nop 0")
            E(f"buffer_load_dwordx4 v{vWD+t}, s[{S_W}:{S_W+3}], s{sT0} offen lds")
    for st in range(3):
        issue_stage(st)

    E(f"s_and_b32 s{sT0}, s{sW}, 3")
    E(f"s_lshl_b32 s{sT0}, s{sT0}, 5")
    E(f"v_and_b32 v2, 31, v{vLANE}")
    E(f"v_add_u32 v2, s{sT0}, v2")
    E(f"v_lshrrev_b32 v3, 1, v2")
    E(f"v_and_b32 v3, 7, v3")
    E(f"v_lshrrev_b32 v4, 5, v{vLANE}")
    E(f"v_lshlrev_b32 v2, 7, v2")
    for t in range(4):
        E(f"v_add_u32 v5, {2*t}, v4")
        E(f"v_xor_b32 v5, v5, v3")
        E(f"v_lshl_add_u32 v{vXA+t}, v5, 4, v2")
    E(f"v_lshrrev_b32 v2, 5, v{vLANE}")
    E(f"v_lshlrev_b32 v2, 3, v2")
    E(f"v_bfe_u32 v3, v{vLANE}, 2, 2")
    E(f"v_add_u32 v2, v2, v3")
    E(f"v_mul_u32_u24 v2, 384, v2")
    E(f"v_and_b32 v4, 1, v{vLANE}")
    E(f"v_lshl_add_u32 v2, v4, 3, v2")
    E(f"v_add_u32 v2, {XB}, v2")
    E(f"v_bfe_u32 v4, v{vLANE}, 4, 1")
    E(f"v_lshlrev_b32 v4, 1, v4")
    E(f"v_bfe_u32 v5, v{vLANE}, 1, 1")
    E(f"v_add_u32 v4, v4, v5")
    E(f"v_lshlrev_b32 v3, 1, v3")
    E(f"v_and_b32 v3, 4, v3")
    E(f"s_lshr_b32 s{sT0}, s{sW}, 2")
    E(f"s_mul_i32 s{sT0}, s{sT0}, 12")
    for b in range(3):
        E(f"v_add_u32 v5, s{sT0}, v4")
        E(f"v_add_u32 v5, {4*b}, v5")
        E(f"v_xor_b32 v5, v5, v3")
        E(f"v_lshl_add_u32 v{vWA+b}, v5, 4, v2")

    E("s_waitcnt vmcnt(27)")
    a = vACC; w = vACC + 4; t0 = vACC + 8
    for d in range(4):
        E(f"v_lshlrev_b32 v{t0}, 16, v{a+d}")
        E(f"v_lshlrev_b32 v{t0+1}, 16, v{w+d}")
        E(f"v_and_b32 v{t0+2}, 0xffff0000, v{a+d}")
        E(f"v_and_b32 v{t0+3}, 0xffff0000, v{w+d}")
        E(f"v_mul_f32 v{t0}, v{t0}, v{t0+1}")
        E(f"v_mul_f32 v{t0+2}, v{t0+2}, v{t0+3}")
        E(f"v_cvt_pk_bf16_f32 v{t0}, v{t0}, v{t0+2}")
        E(f"v_lshlrev_b32 v{t0+1}, 16, v{t0}")
        E(f"v_and_b32 v{t0+2}, 0xffff0000, v{t0}")
        if d == 0:
            E(f"v_add_f32 v{vG}, v{t0+1}, v{t0+2}")
        else:
            E(f"v_add_f32 v{vG}, v{vG}, v{t0+1}")
            E(f"v_add_f32 v{vG}, v{vG}, v{t0+2}")
    for m in (1, 2, 4, 8, 16, 32):
        E(f"v_xor_b32 v{t0}, {m}, v{vLANE}")
        E(f"v_lshlrev_b32 v{t0}, 2, v{t0}")
        E(f"ds_bpermute_b32 v{t0+1}, v{t0}, v{vG}")
        E("s_waitcnt lgkmcnt(0)")
        E(f"v_add_f32 v{vG}, v{vG}, v{t0+1}")
    E(f"v_cvt_pk_bf16_f32 v{vG}, v{vG}, v{vG}")
    E(f"v_lshlrev_b32 v{vG}, 16, v{vG}")
    E(f"v_mul_f32 v{vG}, {hex(f32bits(-LOG2E))}, v{vG}")
    E(f"v_exp_f32 v{vG}, v{vG}")
    E("s_nop 0")
    E(f"v_add_f32 v{vG}, 1.0, v{vG}")
    E(f"v_rcp_f32 v{vG}, v{vG}")
    E("s_nop 0")
    E(f"v_cvt_pk_bf16_f32 v{vG}, v{vG}, v{vG}")
    E(f"v_lshlrev_b32 v{vG}, 16, v{vG}")
    for i in range(48):
        E(f"v_mov_b32 v{vACC+i}, 0")

    E(f"s_cmp_lg_u32 s{sISF}, 0")
    E("s_cbranch_scc1 K1_TTT")
    E(f"s_cmp_ge_u32 s{sCOL}, 1024")
    E("s_cbranch_scc1 K1_NNN")
    E(f"s_cmp_eq_u32 s{sCOL}, 960")
    E("s_cbranch_scc1 K1_TTN")
    E("s_branch K1_TTT")

    def frag_reads(st, t, buf):
        slot = st % 4
        E(f"ds_read_b128 v[{vXF+4*buf}:{vXF+4*buf+3}], v{vXA+t}")
        for b in range(3):
            for e in range(2):
                off = (16 * t + 4 * e) * 384
                d = vWF + 12 * buf + 4 * b + 2 * e
                E(f"ds_read_b64_tr_b16 v[{d}:{d+1}], v{vWA+b} offset:{off}")

    def main_loop(pat):
        for st in range(NST):
            nout = 5 * (min(st + 2, NST - 1) - st)
            E(f"s_waitcnt vmcnt({nout})")
            E("s_barrier")
            if st + 3 < NST:
                issue_stage(st + 3)
            if st > 0:
                delta = SLOT if (st % 4) != 0 else -3 * SLOT
                for r in list(range(vXA, vXA + 4)) + list(range(vWA, vWA + 3)):
                    if delta > 0:
                        E(f"v_add_u32 v{r}, {delta}, v{r}")
                    else:
                        E(f"v_subrev_u32 v{r}, {-delta}, v{r}")
            frag_reads(st, 0, 0)
            for t in range(4):
                buf = t & 1
                if t < 3:
                    frag_reads(st, t + 1, buf ^ 1)
                    E("s_waitcnt lgkmcnt(7)")
                else:
                    E("s_waitcnt lgkmcnt(0)")
                for b in range(3):
                    xf = f"v[{vXF+4*buf}:{vXF+4*buf+3}]"
                    wf = f"v[{vWF+12*buf+4*b}:{vWF+12*buf+4*b+3}]"
                    acc = f"v[{vACC+16*b}:{vACC+16*b+15}]"
                    if pat[b] == 'T':
                        E(f"v_mfma_f32_32x32x16_bf16 {acc}, {wf}, {xf}, {acc}")
                    else:
                        E(f"v_mfma_f32_32x32x16_bf16 {acc}, {xf}, {wf}, {acc}")
    for pat in ("TTT", "TTN", "NNN"):
        E.label(f"K1_{pat}")
        main_loop(pat)
        E("s_branch K1_EPI")

    E.label("K1_EPI")
    E("s_nop 15")
    E("s_nop 3")
    vR, vH, vT = 2, 3, 4
    E(f"v_and_b32 v{vR}, 31, v{vLANE}")
    E(f"v_lshrrev_b32 v{vH}, 5, v{vLANE}")
    sROW = sT1
    E(f"s_and_b32 s{sT0}, s{sW}, 3")
    E(f"s_lshl_b32 s{sT0}, s{sT0}, 5")
    E(f"s_lshl_b32 s{sROW}, s{sMT}, 7")
    E(f"s_add_u32 s{sROW}, s{sROW}, s{sT0}")
    E(f"s_cmp_lg_u32 s{sISF}, 0")
    E("s_cbranch_scc1 K1_EPI_FFN")
    P = vXF
    for b in range(3):
        acc = vACC + 16 * b
        E(f"s_add_u32 s{sT0}, s{sCOL}, {32*b}")
        E(f"s_lshr_b32 s{sT2}, s{sT0}, 9")
        E(f"s_and_b32 s{sT0}, s{sT0}, 511")
        E(f"s_lshr_b32 s{sT0}, s{sT0}, 4")
        E(f"s_cmp_eq_u32 s{sT2}, 1")
        E(f"s_cbranch_scc1 K1_EK{b}")
        E(f"s_cmp_eq_u32 s{sT2}, 2")
        E(f"s_cbranch_scc1 K1_EV{b}")
        for i in range(16):
            E(f"v_mul_f32 v{acc+i}, {hex(f32bits(QSCALE))}, v{acc+i}")
        for i in range(8):
            E(f"v_cvt_pk_bf16_f32 v{P+i}, v{acc+2*i}, v{acc+2*i+1}")
        E(f"v_add_u32 v{vT}, s{sROW}, v{vR}")
        E(f"v_lshlrev_b32 v{vT}, 5, v{vT}")
        E(f"v_lshl_add_u32 v{vT}, v{vH}, 4, v{vT}")
        E(f"s_lshl_b32 s{sT0}, s{sT0}, 16")
        E(f"s_add_u32 s{sT0}, s{sT0}, {WS_Q}")
        E(f"buffer_store_dwordx4 v[{P}:{P+3}], v{vT}, s[{S_WS}:{S_WS+3}], s{sT0} offen")
        E(f"s_add_u32 s{sT0}, s{sT0}, 65536")
        E(f"buffer_store_dwordx4 v[{P+4}:{P+7}], v{vT}, s[{S_WS}:{S_WS+3}], s{sT0} offen")
        E(f"s_branch K1_EN{b}")
        E.label(f"K1_EK{b}")
        for i in range(8):
            E(f"v_cvt_pk_bf16_f32 v{P+i}, v{acc+2*i}, v{acc+2*i+1}")
        E(f"v_lshlrev_b32 v{vT}, 4, v{vR}")
        E(f"v_lshl_add_u32 v{vT}, v{vH}, 9, v{vT}")
        E(f"s_lshl_b32 s{sT0}, s{sT0}, 16")
        E(f"s_lshl_b32 s{sT2}, s{sROW}, 5")
        E(f"s_add_u32 s{sT0}, s{sT0}, s{sT2}")
        E(f"s_add_u32 s{sT0}, s{sT0}, {WS_K}")
        E(f"buffer_store_dwordx4 v[{P}:{P+3}], v{vT}, s[{S_WS}:{S_WS+3}], s{sT0} offen")
        E(f"s_add_u32 s{sT0}, s{sT0}, 65536")
        E(f"buffer_store_dwordx4 v[{P+4}:{P+7}], v{vT}, s[{S_WS}:{S_WS+3}], s{sT0} offen")
        E(f"s_branch K1_EN{b}")
        E.label(f"K1_EV{b}")
        for i in range(8):
            E(f"v_cvt_pk_bf16_f32 v{P+i}, v{acc+2*i}, v{acc+2*i+1}")
        E(f"v_and_b32 v{vT}, 15, v{vR}")
        E(f"v_lshlrev_b32 v{vT}, 4, v{vT}")
        E(f"v_lshl_add_u32 v{vT}, v{vH}, 8, v{vT}")
        E(f"v_lshrrev_b32 v{vT+1}, 4, v{vR}")
        E(f"v_lshl_add_u32 v{vT}, v{vT+1}, 16, v{vT}")
        E(f"s_lshl_b32 s{sT0}, s{sT0}, 16")
        E(f"s_lshl_b32 s{sT2}, s{sROW}, 5")
        E(f"s_add_u32 s{sT0}, s{sT0}, s{sT2}")
        E(f"s_add_u32 s{sT0}, s{sT0}, {WS_V}")
        E(f"buffer_store_dwordx4 v[{P}:{P+3}], v{vT}, s[{S_WS}:{S_WS+3}], s{sT0} offen")
        E(f"buffer_store_dwordx4 v[{P+4}:{P+7}], v{vT}, s[{S_WS}:{S_WS+3}], s{sT0} offen offset:512")
        E.label(f"K1_EN{b}")
        E("s_nop 1")
    E("s_branch K1_GATE")

    E.label("K1_EPI_FFN")
    E(f"v_add_u32 v{vT}, s{sROW}, v{vR}")
    E(f"v_mul_u32_u24 v{vT}, 2752, v{vT}")
    E(f"v_lshl_add_u32 v{vT}, v{vH}, 4, v{vT}")
    E(f"s_mov_b32 s60, {hex(f32bits(LOG2E))}")
    E(f"s_mov_b32 s61, s60")
    E(f"s_mov_b32 s62, 2.0")
    E(f"s_mov_b32 s63, 2.0")
    B = vXF
    X = vXF + 16
    for b in range(3):
        acc = vACC + 16 * b
        E(f"s_add_u32 s{sT0}, s{sCOL}, {32*b}")
        E(f"s_cmp_ge_u32 s{sT0}, 1376")
        E(f"s_cbranch_scc1 K1_GATE")
        for g in range(2):
            for e in range(2):
                src = vBIAS + (b * 4 + g * 2 + e) * 2
                dst = B + g * 8 + e * 4
                E(f"v_lshlrev_b32 v{dst}, 16, v{src}")
                E(f"v_and_b32 v{dst+1}, 0xffff0000, v{src}")
                E(f"v_lshlrev_b32 v{dst+2}, 16, v{src+1}")
                E(f"v_and_b32 v{dst+3}, 0xffff0000, v{src+1}")
        for i in range(0, 16, 2):
            E(f"v_pk_add_f32 v[{acc+i}:{acc+i+1}], v[{acc+i}:{acc+i+1}], v[{B+i}:{B+i+1}]")
        for i in range(0, 16, 2):
            E(f"v_pk_mul_f32 v[{X+i}:{X+i+1}], v[{acc+i}:{acc+i+1}], s[60:61]")
        for i in range(16):
            E(f"v_min_f32 v{X+i}, 0x42200000, v{X+i}")
        for i in range(16):
            E(f"v_exp_f32 v{X+i}, v{X+i}")
        for i in range(0, 16, 2):
            E(f"v_pk_add_f32 v[{B+i}:{B+i+1}], v[{X+i}:{X+i+1}], s[62:63]")
        for i in range(0, 16, 2):
            E(f"v_pk_mul_f32 v[{X+i}:{X+i+1}], v[{X+i}:{X+i+1}], v[{B+i}:{B+i+1}]")
        for i in range(0, 16, 2):
            E(f"v_pk_add_f32 v[{B+i}:{B+i+1}], v[{X+i}:{X+i+1}], s[62:63]")
        for i in range(16):
            E(f"v_rcp_f32 v{B+i}, v{B+i}")
        for i in range(0, 16, 2):
            E(f"v_pk_mul_f32 v[{X+i}:{X+i+1}], v[{X+i}:{X+i+1}], v[{acc+i}:{acc+i+1}]")
        for i in range(0, 16, 2):
            E(f"v_pk_mul_f32 v[{X+i}:{X+i+1}], v[{X+i}:{X+i+1}], v[{B+i}:{B+i+1}]")
        for i in range(8):
            E(f"v_cvt_pk_bf16_f32 v{B+i}, v{X+2*i}, v{X+2*i+1}")
        E(f"s_lshl_b32 s{sT0}, s{sT0}, 1")
        E(f"s_add_u32 s{sT0}, s{sT0}, {WS_ACT}")
        E(f"buffer_store_dwordx4 v[{B}:{B+3}], v{vT}, s[{S_WS}:{S_WS+3}], s{sT0} offen")
        E(f"buffer_store_dwordx4 v[{B+4}:{B+7}], v{vT}, s[{S_WS}:{S_WS+3}], s{sT0} offen offset:32")
        E("s_nop 1")
    E.label("K1_GATE")
    E(f"s_lshl_b32 s{sT0}, s2, 3")
    E(f"s_add_u32 s{sT0}, s{sT0}, s{sW}")
    E(f"s_lshl_b32 s{sT0}, s{sT0}, 2")
    E(f"s_add_u32 s{sT0}, s{sT0}, {WS_G}")
    E(f"v_mov_b32 v2, 0")
    E(f"v_cmp_eq_u32 vcc, 0, v{vLANE}")
    E("s_and_saveexec_b64 s[64:65], vcc")
    E(f"buffer_store_dword v{vG}, v2, s[{S_WS}:{S_WS+3}], s{sT0} offen")
    E("s_mov_b64 exec, s[64:65]")
    E.label("K1_END")
    E("s_endpgm")
    return name, 128

def gen_k2(E):
    name = "k2_attn_kernel"
    kernel_start(E, name)
    S_WS = 20
    sW, sH, sQB, sT0, sT1, sPASS, sIT = 40, 41, 42, 43, 44, 45, 46
    vLANE = 1
    vKA, vVA = 4, 5
    vDMA = 6
    vQ = 8
    vKF = 12
    vVF = 20
    vP = 36
    vS = 48
    vC = 80
    vO = 96
    vT = 112
    E("s_cmp_ge_u32 s2, 256")
    E("s_cbranch_scc1 K2_END")
    E("s_load_dwordx2 s[14:15], s[0:1], 80")
    E(f"v_and_b32 v{vLANE}, 63, v0")
    E("v_lshrrev_b32 v2, 6, v0")
    E("s_nop 0")
    E(f"v_readfirstlane_b32 s{sW}, v2")
    E(f"s_and_b32 s{sT0}, s2, 7")
    E(f"s_lshl_b32 s{sH}, s{sT0}, 2")
    E(f"s_lshr_b32 s{sT0}, s2, 6")
    E(f"s_add_u32 s{sH}, s{sH}, s{sT0}")
    E(f"s_lshr_b32 s{sQB}, s2, 3")
    E(f"s_and_b32 s{sQB}, s{sQB}, 7")
    E("s_waitcnt lgkmcnt(0)")
    make_srd(E, S_WS, 14, WS_SIZE)
    E(f"v_and_b32 v2, 31, v{vLANE}")
    E(f"v_lshrrev_b32 v3, 5, v{vLANE}")
    E(f"v_lshlrev_b32 v2, 5, v2")
    E(f"v_lshl_add_u32 v2, v3, 4, v2")
    E(f"s_lshl_b32 s{sT0}, s{sH}, 11")
    E(f"s_lshl_b32 s{sT1}, s{sQB}, 8")
    E(f"s_add_u32 s{sT0}, s{sT0}, s{sT1}")
    E(f"s_lshl_b32 s{sT1}, s{sW}, 5")
    E(f"s_add_u32 s{sT0}, s{sT0}, s{sT1}")
    E(f"s_lshl_b32 s{sT0}, s{sT0}, 5")
    E(f"s_add_u32 s{sT0}, s{sT0}, {WS_Q}")
    E(f"buffer_load_dwordx4 v[{vQ}:{vQ+3}], v2, s[{S_WS}:{S_WS+3}], s{sT0} offen")
    E(f"v_lshlrev_b32 v{vDMA}, 4, v{vLANE}")
    E(f"s_lshl_b32 s{sT1}, s{sW}, 10")
    E(f"s_lshl_b32 s{sT0}, s{sH}, 16")
    E(f"s_add_u32 s{sT0}, s{sT0}, s{sT1}")
    for c in range(8):
        E(f"s_add_u32 m0, s{sT1}, {c*8192}")
        E(f"s_add_u32 s50, s{sT0}, {WS_K + c*8192}")
        E(f"buffer_load_dwordx4 v{vDMA}, s[{S_WS}:{S_WS+3}], s50 offen lds")
        E(f"s_add_u32 m0, s{sT1}, {65536 + c*8192}")
        E(f"s_add_u32 s50, s{sT0}, {WS_V + c*8192}")
        E(f"buffer_load_dwordx4 v{vDMA}, s[{S_WS}:{S_WS+3}], s50 offen lds")
    E(f"v_and_b32 v2, 31, v{vLANE}")
    E(f"v_cmp_eq_u32 vcc, 16, v2")
    E(f"v_mov_b32 v3, 0x3f803f80")
    E("s_nop 0")
    E(f"v_cndmask_b32 v3, 0, v3, vcc")
    for i in range(16):
        E(f"v_mov_b32 v{vVF+i}, v3")
    E("s_mov_b32 s52, 0x0000ffff")
    E("s_mov_b32 s53, 0x0000ffff")
    E(f"s_mov_b32 s{sPASS}, 0")
    E("s_waitcnt vmcnt(14)")
    E("s_barrier")
    E(f"v_lshlrev_b32 v{vKA}, 4, v{vLANE}")
    E(f"ds_read_b128 v[{vKF}:{vKF+3}], v{vKA}")
    E("s_waitcnt lgkmcnt(0)")
    E(f"v_mfma_f32_32x32x16_bf16 v[{vS}:{vS+15}], v[{vKF}:{vKF+3}], v[{vQ}:{vQ+3}], 0")
    E("s_nop 15")
    def rowmax16(src, dst):
        E(f"v_max3_f32 v{dst}, v{src}, v{src+1}, v{src+2}")
        for i in range(3, 15, 2):
            E(f"v_max3_f32 v{dst}, v{dst}, v{src+i}, v{src+i+1}")
        E(f"v_max_f32 v{dst}, v{dst}, v{src+15}")
    def cross_half_max(reg):
        E(f"v_mov_b32 v{vT+1}, v{reg}")
        E(f"v_mov_b32 v{vT+2}, v{reg}")
        E("s_nop 1")
        E(f"v_permlane32_swap_b32 v{vT+1}, v{vT+2}")
        E("s_nop 1")
        E(f"v_max_f32 v{reg}, v{vT+1}, v{vT+2}")
    rowmax16(vS, vT)
    cross_half_max(vT)
    E.label("K2_RUN")
    for i in range(16):
        E(f"v_sub_f32 v{vC+i}, 0, v{vT}")
    for i in range(16):
        E(f"v_mov_b32 v{vO+i}, 0")
    E(f"v_lshlrev_b32 v{vKA}, 4, v{vLANE}")
    E(f"v_and_b32 v2, 31, v{vLANE}")
    E(f"v_lshrrev_b32 v3, 5, v{vLANE}")
    E(f"v_lshlrev_b32 v2, 4, v2")
    E(f"v_lshl_add_u32 v2, v3, 8, v2")
    E(f"v_add_u32 v{vVA}, 65536, v2")
    def rdK(buf, tile_off):
        E(f"ds_read_b128 v[{vKF+4*buf}:{vKF+4*buf+3}], v{vKA} offset:{tile_off*1024}")
    def rdV(buf, tile_off):
        E("s_mov_b64 exec, s[52:53]")
        E(f"ds_read_b128 v[{vVF+8*buf}:{vVF+8*buf+3}], v{vVA} offset:{tile_off*1024}")
        E(f"ds_read_b128 v[{vVF+8*buf+4}:{vVF+8*buf+7}], v{vVA} offset:{tile_off*1024+512}")
        E("s_mov_b64 exec, -1")
    def qk(sbuf, kbuf):
        E(f"v_mfma_f32_32x32x16_bf16 v[{vS+16*sbuf}:{vS+16*sbuf+15}], v[{vKF+4*kbuf}:{vKF+4*kbuf+3}], v[{vQ}:{vQ+3}], v[{vC}:{vC+15}]")
    rdK(0, 0); rdK(1, 1); rdV(0, 0)
    E("s_waitcnt lgkmcnt(3)")
    qk(0, 0)
    E(f"s_mov_b32 s{sIT}, 0")
    E.label("K2_LOOP")
    for half in range(2):
        X = half; Y = half ^ 1
        E("s_waitcnt lgkmcnt(2)")
        qk(Y, Y)
        rdK(X, half + 2)
        s = vS + 16 * X
        for i in range(8):
            E(f"v_exp_f32 v{s+i}, v{s+i}")
        for i in range(4):
            E(f"v_cvt_pk_bf16_f32 v{vP+i}, v{s+2*i}, v{s+2*i+1}")
        E("s_waitcnt lgkmcnt(1)")
        for i in range(8, 10):
            E(f"v_exp_f32 v{s+i}, v{s+i}")
        E(f"v_mfma_f32_32x32x16_bf16 v[{vO}:{vO+15}], v[{vVF+8*X}:{vVF+8*X+3}], v[{vP}:{vP+3}], v[{vO}:{vO+15}]")
        for i in range(10, 16):
            E(f"v_exp_f32 v{s+i}, v{s+i}")
        for i in range(4, 8):
            E(f"v_cvt_pk_bf16_f32 v{vP+i}, v{s+2*i}, v{s+2*i+1}")
        rdV(Y, half + 1)
        E(f"v_mfma_f32_32x32x16_bf16 v[{vO}:{vO+15}], v[{vVF+8*X+4}:{vVF+8*X+7}], v[{vP+4}:{vP+7}], v[{vO}:{vO+15}]")
    E(f"v_add_u32 v{vKA}, 2048, v{vKA}")
    E(f"v_add_u32 v{vVA}, 2048, v{vVA}")
    E(f"s_add_u32 s{sIT}, s{sIT}, 1")
    E(f"s_cmp_lg_u32 s{sIT}, 2")
    E("s_cbranch_scc1 K2_NOBAR")
    E(f"s_cmp_lg_u32 s{sPASS}, 0")
    E("s_cbranch_scc1 K2_NOBAR")
    E("s_waitcnt vmcnt(0)")
    E("s_barrier")
    E.label("K2_NOBAR")
    E(f"s_cmp_lt_u32 s{sIT}, 32")
    E("s_cbranch_scc1 K2_LOOP")
    E("s_waitcnt lgkmcnt(0)")
    E("s_nop 15")
    E(f"v_mov_b32 v{vT+1}, v{vO+8}")
    E(f"v_mov_b32 v{vT+2}, v{vO+8}")
    E("s_nop 1")
    E(f"v_permlane32_swap_b32 v{vT+1}, v{vT+2}")
    E(f"s_cmp_lg_u32 s{sPASS}, 0")
    E("s_cbranch_scc1 K2_FIN")
    E(f"v_max3_f32 v{vT+3}, |v{vO}|, |v{vO+1}|, |v{vO+2}|")
    E(f"v_max3_f32 v{vT+3}, v{vT+3}, |v{vO+3}|, |v{vO+4}|")
    E(f"v_max3_f32 v{vT+3}, v{vT+3}, |v{vO+5}|, |v{vO+6}|")
    E(f"v_max_f32 v{vT+3}, v{vT+3}, |v{vO+7}|")
    E(f"s_mov_b32 s54, 0x5d800000")
    E(f"s_mov_b32 s55, 0x7f000000")
    E(f"v_cmp_nlt_f32 vcc, v{vT+1}, s54")
    E(f"v_cmp_nlt_f32 s[56:57], v{vT+3}, s55")
    E("s_nop 1")
    E("s_or_b64 vcc, vcc, s[56:57]")
    E("s_cbranch_vccz K2_FIN")
    E(f"v_lshlrev_b32 v{vKA}, 4, v{vLANE}")
    E(f"v_mov_b32 v{vT}, 0xff800000")
    E(f"s_mov_b32 s{sIT}, 0")
    E.label("K2_MAXLOOP")
    E(f"ds_read_b128 v[{vKF}:{vKF+3}], v{vKA}")
    E("s_waitcnt lgkmcnt(0)")
    E(f"v_mfma_f32_32x32x16_bf16 v[{vS}:{vS+15}], v[{vKF}:{vKF+3}], v[{vQ}:{vQ+3}], 0")
    E("s_nop 15")
    for i in range(0, 16, 2):
        E(f"v_max3_f32 v{vT}, v{vT}, v{vS+i}, v{vS+i+1}")
    E(f"v_add_u32 v{vKA}, 1024, v{vKA}")
    E(f"s_add_u32 s{sIT}, s{sIT}, 1")
    E(f"s_cmp_lt_u32 s{sIT}, 64")
    E("s_cbranch_scc1 K2_MAXLOOP")
    cross_half_max(vT)
    E(f"s_mov_b32 s{sPASS}, 1")
    E("s_branch K2_RUN")
    E.label("K2_FIN")
    E(f"v_rcp_f32 v{vT+1}, v{vT+1}")
    E("s_nop 0")
    for i in range(8):
        E(f"v_mul_f32 v{vO+i}, v{vO+i}, v{vT+1}")
    for i in range(4):
        E(f"v_cvt_pk_bf16_f32 v{vP+i}, v{vO+2*i}, v{vO+2*i+1}")
    E(f"v_and_b32 v2, 31, v{vLANE}")
    E(f"v_lshrrev_b32 v3, 5, v{vLANE}")
    E(f"v_lshlrev_b32 v2, 10, v2")
    E(f"v_lshl_add_u32 v2, v3, 4, v2")
    E(f"s_lshl_b32 s{sT0}, s{sQB}, 8")
    E(f"s_lshl_b32 s{sT1}, s{sW}, 5")
    E(f"s_add_u32 s{sT0}, s{sT0}, s{sT1}")
    E(f"s_lshl_b32 s{sT0}, s{sT0}, 10")
    E(f"s_lshl_b32 s{sT1}, s{sH}, 5")
    E(f"s_add_u32 s{sT0}, s{sT0}, s{sT1}")
    E(f"s_add_u32 s{sT0}, s{sT0}, {WS_O}")
    E(f"buffer_store_dwordx4 v[{vP}:{vP+3}], v2, s[{S_WS}:{S_WS+3}], s{sT0} offen")
    E.label("K2_END")
    E("s_endpgm")
    return name, 128

def gen_k3(E):
    name = "k3_out_kernel"
    kernel_start(E, name)
    NS = 9; SLOT = 16384; AB = 8192
    S_WS, S_WO, S_W2, S_OUT = 20, 24, 28, 32
    sW, sMT, sNT, sT0, sT1, sAM0, sBM0 = 40, 41, 42, 43, 44, 45, 46
    vLANE = 1
    vAD1 = 8
    vAD2 = 10
    vBD = 12
    vAA = 14
    vBA = 18
    vG = 19
    vAF = 24
    vBF = 32
    vACC1 = 48
    vACC2 = 64
    vT = 80
    E("s_cmp_ge_u32 s2, 256")
    E("s_cbranch_scc1 K3_END")
    E("s_load_dwordx2 s[4:5], s[0:1], 16")
    E("s_load_dwordx2 s[6:7], s[0:1], 48")
    E("s_load_dwordx2 s[8:9], s[0:1], 64")
    E("s_load_dwordx2 s[14:15], s[0:1], 80")
    E(f"v_and_b32 v{vLANE}, 63, v0")
    E("v_lshrrev_b32 v2, 6, v0")
    E("s_nop 0")
    E(f"v_readfirstlane_b32 s{sW}, v2")
    E(f"s_and_b32 s{sT0}, s2, 7")
    E(f"s_lshr_b32 s{sT1}, s2, 3")
    E(f"s_lshl_b32 s{sMT}, s{sT0}, 2")
    E(f"s_and_b32 s{sT0}, s{sT1}, 3")
    E(f"s_add_u32 s{sMT}, s{sMT}, s{sT0}")
    E(f"s_lshr_b32 s{sNT}, s{sT1}, 2")
    E("s_waitcnt lgkmcnt(0)")
    make_srd(E, S_WS, 14, WS_SIZE)
    make_srd(E, S_WO, 4, 512 * 1024)
    make_srd(E, S_W2, 6, 1376 * 1024)
    make_srd(E, S_OUT, 8, 2048 * 1024)
    for t in range(2):
        E(f"s_lshl_b32 s{sT0}, s{sW}, 4")
        E(f"s_add_u32 s{sT0}, s{sT0}, {8*t}")
        E(f"v_lshrrev_b32 v2, 3, v{vLANE}")
        E(f"v_add_u32 v2, s{sT0}, v2")
        E(f"v_lshrrev_b32 v3, 1, v2")
        E(f"v_and_b32 v3, 7, v3")
        E(f"v_and_b32 v4, 7, v{vLANE}")
        E(f"v_xor_b32 v3, v3, v4")
        E(f"s_lshl_b32 s{sT0}, s{sMT}, 6")
        E(f"v_add_u32 v2, s{sT0}, v2")
        E(f"v_lshlrev_b32 v4, 10, v2")
        E(f"v_lshl_add_u32 v4, v3, 4, v4")
        E(f"v_add_u32 v{vAD1+t}, {WS_O}, v4")
        E(f"v_mul_u32_u24 v4, 2752, v2")
        E(f"v_lshl_add_u32 v4, v3, 4, v4")
        E(f"v_add_u32 v{vAD2+t}, {WS_ACT}, v4")
    for t in range(2):
        E(f"s_lshl_b32 s{sT0}, s{sW}, 4")
        E(f"s_add_u32 s{sT0}, s{sT0}, {8*t}")
        E(f"v_lshrrev_b32 v2, 3, v{vLANE}")
        E(f"v_add_u32 v2, s{sT0}, v2")
        E(f"v_lshlrev_b32 v3, 1, v2")
        E(f"v_and_b32 v3, 4, v3")
        E(f"v_and_b32 v4, 7, v{vLANE}")
        E(f"v_xor_b32 v3, v3, v4")
        E(f"v_lshlrev_b32 v2, 10, v2")
        E(f"v_lshl_add_u32 v2, v3, 4, v2")
        E(f"s_lshl_b32 s{sT0}, s{sNT}, 7")
        E(f"v_add_u32 v{vBD+t}, s{sT0}, v2")
    E(f"s_lshl_b32 s{sAM0}, s{sW}, 11")
    E(f"s_add_u32 s{sBM0}, s{sAM0}, {AB}")
    NST = 30
    def issue_stage(st):
        slot = st % NS
        if st < 8:
            ad, bs, ka = vAD1, S_WO, st
        else:
            ad, bs, ka = vAD2, S_W2, st - 8
        E(f"s_mov_b32 s{sT0}, {ka*128}")
        for t in range(2):
            E(f"s_add_u32 m0, s{sAM0}, {slot*SLOT + t*1024}")
            E("s_nop 0")
            E(f"buffer_load_dwordx4 v{ad+t}, s[{S_WS}:{S_WS+3}], s{sT0} offen lds")
        E(f"s_mov_b32 s{sT0}, {ka*65536}")
        for t in range(2):
            E(f"s_add_u32 m0, s{sBM0}, {slot*SLOT + t*1024}")
            E("s_nop 0")
            E(f"buffer_load_dwordx4 v{vBD+t}, s[{bs}:{bs+3}], s{sT0} offen lds")
    PD = NS - 1
    E(f"s_and_b32 s{sT0}, s{sW}, 1")
    E(f"s_lshl_b32 s{sT0}, s{sT0}, 5")
    E(f"s_lshl_b32 s{sT1}, s{sMT}, 6")
    E(f"s_add_u32 s{sT0}, s{sT0}, s{sT1}")
    E(f"s_mov_b32 s47, s{sT0}")
    E(f"s_lshl_b32 s{sT0}, s{sT0}, 2")
    E(f"s_add_u32 s{sT0}, s{sT0}, {WS_G}")
    E(f"v_and_b32 v2, 31, v{vLANE}")
    E(f"v_lshlrev_b32 v2, 2, v2")
    E(f"buffer_load_dword v{vG}, v2, s[{S_WS}:{S_WS+3}], s{sT0} offen")
    for st in range(PD):
        issue_stage(st)
    E(f"s_and_b32 s{sT0}, s{sW}, 1")
    E(f"s_lshl_b32 s{sT0}, s{sT0}, 5")
    E(f"v_and_b32 v2, 31, v{vLANE}")
    E(f"v_add_u32 v2, s{sT0}, v2")
    E(f"v_lshrrev_b32 v3, 1, v2")
    E(f"v_and_b32 v3, 7, v3")
    E(f"v_lshrrev_b32 v4, 5, v{vLANE}")
    E(f"v_lshlrev_b32 v2, 7, v2")
    for t in range(4):
        E(f"v_add_u32 v5, {2*t}, v4")
        E(f"v_xor_b32 v5, v5, v3")
        E(f"v_lshl_add_u32 v{vAA+t}, v5, 4, v2")
    E(f"v_lshrrev_b32 v2, 5, v{vLANE}")
    E(f"v_lshlrev_b32 v2, 2, v2")
    E(f"v_bfe_u32 v3, v{vLANE}, 2, 2")
    E(f"v_add_u32 v2, v2, v3")
    E(f"v_lshlrev_b32 v2, 7, v2")
    E(f"v_and_b32 v4, 1, v{vLANE}")
    E(f"v_lshl_add_u32 v2, v4, 3, v2")
    E(f"v_add_u32 v2, {AB}, v2")
    E(f"v_bfe_u32 v4, v{vLANE}, 4, 1")
    E(f"v_lshlrev_b32 v4, 1, v4")
    E(f"v_bfe_u32 v5, v{vLANE}, 1, 1")
    E(f"v_add_u32 v4, v4, v5")
    E(f"s_lshr_b32 s{sT0}, s{sW}, 1")
    E(f"s_lshl_b32 s{sT0}, s{sT0}, 2")
    E(f"v_add_u32 v4, s{sT0}, v4")
    E(f"v_lshlrev_b32 v3, 1, v3")
    E(f"v_and_b32 v3, 4, v3")
    E(f"v_xor_b32 v4, v4, v3")
    E(f"v_lshl_add_u32 v{vBA}, v4, 4, v2")
    for i in range(32):
        E(f"v_mov_b32 v{vACC1+i}, 0")
    def frag_reads(t, buf):
        E(f"ds_read_b128 v[{vAF+4*buf}:{vAF+4*buf+3}], v{vAA+t}")
        for e in range(2):
            off = (16 * t + 8 * e) * 128
            d = vBF + 4 * buf + 2 * e
            E(f"ds_read_b64_tr_b16 v[{d}:{d+1}], v{vBA} offset:{off}")
    for st in range(NST):
        nout = 4 * (min(st + PD - 1, NST - 1) - st)
        E(f"s_waitcnt vmcnt({nout})")
        E("s_barrier")
        if st + PD < NST:
            issue_stage(st + PD)
        if st > 0:
            delta = SLOT if (st % NS) != 0 else -(NS - 1) * SLOT
            for r in list(range(vAA, vAA + 4)) + [vBA]:
                if delta > 0:
                    E(f"v_add_u32 v{r}, {delta}, v{r}")
                else:
                    E(f"v_subrev_u32 v{r}, {-delta}, v{r}")
        nk = 4 if st < NST - 1 else 2
        acc = vACC1 if st < 8 else vACC2
        frag_reads(0, 0)
        for t in range(nk):
            buf = t & 1
            if t < nk - 1:
                frag_reads(t + 1, buf ^ 1)
                E("s_waitcnt lgkmcnt(3)")
            else:
                E("s_waitcnt lgkmcnt(0)")
            E(f"v_mfma_f32_32x32x16_bf16 v[{acc}:{acc+15}], v[{vBF+4*buf}:{vBF+4*buf+3}], v[{vAF+4*buf}:{vAF+4*buf+3}], v[{acc}:{acc+15}]")
    E("s_nop 15")
    E("s_nop 3")
    E(f"v_sub_f32 v{vT}, 1.0, v{vG}")
    E(f"v_cvt_pk_bf16_f32 v{vT}, v{vT}, v{vT}")
    E(f"v_lshlrev_b32 v{vT}, 16, v{vT}")
    def rnd_pair(r):
        E(f"v_cvt_pk_bf16_f32 v{vT+1}, v{r}, v{r+1}")
        E(f"v_lshlrev_b32 v{r}, 16, v{vT+1}")
        E(f"v_and_b32 v{r+1}, 0xffff0000, v{vT+1}")
    for i in range(0, 16, 2):
        rnd_pair(vACC1 + i); rnd_pair(vACC2 + i)
        E(f"v_mul_f32 v{vACC1+i}, v{vG}, v{vACC1+i}")
        E(f"v_mul_f32 v{vACC1+i+1}, v{vG}, v{vACC1+i+1}")
        E(f"v_mul_f32 v{vACC2+i}, v{vT}, v{vACC2+i}")
        E(f"v_mul_f32 v{vACC2+i+1}, v{vT}, v{vACC2+i+1}")
        rnd_pair(vACC1 + i); rnd_pair(vACC2 + i)
        E(f"v_add_f32 v{vACC1+i}, v{vACC1+i}, v{vACC2+i}")
        E(f"v_add_f32 v{vACC1+i+1}, v{vACC1+i+1}, v{vACC2+i+1}")
        E(f"v_cvt_pk_bf16_f32 v{vT+4+i//2}, v{vACC1+i}, v{vACC1+i+1}")
    E(f"v_and_b32 v2, 31, v{vLANE}")
    E(f"v_lshrrev_b32 v3, 5, v{vLANE}")
    E(f"v_lshlrev_b32 v2, 10, v2")
    E(f"v_lshl_add_u32 v2, v3, 3, v2")
    E(f"s_lshl_b32 s{sT0}, s47, 10")
    E(f"s_lshl_b32 s{sT1}, s{sNT}, 7")
    E(f"s_add_u32 s{sT0}, s{sT0}, s{sT1}")
    E(f"s_lshr_b32 s{sT1}, s{sW}, 1")
    E(f"s_lshl_b32 s{sT1}, s{sT1}, 6")
    E(f"s_add_u32 s{sT0}, s{sT0}, s{sT1}")
    for q in range(4):
        E(f"buffer_store_dwordx2 v[{vT+4+2*q}:{vT+5+2*q}], v2, s[{S_OUT}:{S_OUT+3}], s{sT0} offen offset:{16*q}")
    E.label("K3_END")
    E("s_endpgm")
    return name, 96

def main():
    hdr = open(f"cdna_kernels/{NAME}.s.ref").read().split("\n")
    head = [l for l in hdr if l.startswith(";") and "@launch" not in l]
    E = Asm()
    k1, v1 = gen_k1(E)
    k2, v2 = gen_k2(E)
    k3, v3 = gen_k3(E)
    out = "\n".join(head) + "\n"
    out += f"; @launch kernel={k1} grid=(256,1,1) block=(512,1,1) lds=163840\n"
    out += f"; @launch kernel={k2} grid=(256,1,1) block=(512,1,1) lds=131072\n"
    out += f"; @launch kernel={k3} grid=(256,1,1) block=(256,1,1) lds={9*16384}\n"
    out += '.amdgcn_target "amdgcn-amd-amdhsa--gfx950"\n.text\n'
    out += E.text()
    out += '.section .rodata,"a"\n'
    out += kernel_desc(k1, v1) + kernel_desc(k2, v2) + kernel_desc(k3, v3)
    open(OUT, "w").write(out)
    print("wrote", OUT, len(out))

if __name__ == "__main__":
    main()
```

```python
import sys, math

NAME = "gated_mix__softmax_full_mha__dense_activation_mish__prompt"
OUT = f"cdna_kernels/{NAME}.s"
import os as _os
if int(_os.environ.get("DIAG","0")): OUT = "diag.s"

WS_Q   = 0
WS_K   = 2 << 20
WS_V   = 4 << 20
WS_O   = 6 << 20
WS_ACT = 8 << 20
WS_G   = 14 << 20
WS_B   = 15 << 20
WS_SIZE = 18 << 20

LOG2E = 1.4426950408889634
QSCALE = 0.25 * LOG2E

def f32bits(x):
    import struct
    return struct.unpack("<I", struct.pack("<f", x))[0]

import os
DIAG = int(os.environ.get("DIAG", "0"))
WS_DBG = 17 << 20
class Asm:
    def __init__(self):
        self.lines = []
        self.nstamp = 0
    def stamp(self):
        if not DIAG: return
        r = 70 + 2 * self.nstamp
        assert r < 100
        self(f"s_memtime s[{r}:{r+1}]")
        self("s_waitcnt lgkmcnt(0)")
        self.nstamp += 1
    def dump_stamps(self, srd, swave, kidx):
        if not DIAG: return
        self(f"s_lshl_b32 s68, s2, 4")
        self(f"s_add_u32 s68, s68, s{swave}")
        self(f"s_lshl_b32 s68, s68, 6")
        self(f"s_add_u32 s68, s68, {WS_DBG + kidx * 0x40000}")
        self(f"v_mov_b32 v2, 0")
        for i in range(self.nstamp):
            self(f"v_mov_b32 v3, s{70+2*i}")
            self(f"buffer_store_dword v3, v2, s[{srd}:{srd+3}], s68 offen offset:{4*i}")
            self("s_nop 1")
        self.nstamp = 0
    def __call__(self, s):
        self.lines.append("    " + s)
    def label(self, s):
        self.lines.append(s + ":")
    def raw(self, s):
        self.lines.append(s)
    def comment(self, s):
        self.lines.append("    ; " + s)
    def text(self):
        return "\n".join(self.lines) + "\n"

class VM:
    def __init__(self, E):
        self.E = E; self.ops = []
    def issue(self, tag):
        self.ops.append(tag)
    def wait(self, tag):
        idx = max(i for i, t in enumerate(self.ops) if t == tag)
        n = len(self.ops) - 1 - idx
        assert n <= 63
        self.E(f"s_waitcnt vmcnt({n})")
    def snap(self):
        return list(self.ops)
    def restore(self, s):
        self.ops = list(s)

def vr(a, n=1):
    return f"v{a}" if n == 1 else f"v[{a}:{a+n-1}]"
def sr(a, n=1):
    return f"s{a}" if n == 1 else f"s[{a}:{a+n-1}]"

def kernel_start(E, name):
    E.raw(f".globl {name}")
    E.raw(".p2align 8")
    E.raw(f".type {name},@function")
    E.label(name)

def kernel_desc(name, vgpr, sgpr=102):
    acc = (vgpr + 3) // 4 * 4
    return f""".p2align 6
.amdhsa_kernel {name}
  .amdhsa_next_free_vgpr {vgpr}
  .amdhsa_next_free_sgpr {sgpr}
  .amdhsa_accum_offset {acc}
  .amdhsa_group_segment_fixed_size 0
  .amdhsa_kernarg_size 88
  .amdhsa_user_sgpr_count 2
  .amdhsa_user_sgpr_kernarg_segment_ptr 1
  .amdhsa_system_sgpr_workgroup_id_x 1
.end_amdhsa_kernel
"""

def make_srd(E, d, base, size):
    E(f"s_mov_b32 s{d}, s{base}")
    E(f"s_and_b32 s{d+1}, s{base+1}, 0xffff")
    E(f"s_mov_b32 s{d+2}, {size}")
    E(f"s_mov_b32 s{d+3}, 0x00020000")

def gen_k1(E):
    name = "k1_proj_kernel"
    kernel_start(E, name)
    vm = VM(E)
    SLOT = 40960; XB = 16384
    NST = 8
    S_X, S_W, S_WS, S_B1, S_GW = 20, 24, 28, 32, 36
    sW, sMT, sNT, sRS, sN0, sT0, sT1, sT2 = 40, 41, 42, 43, 44, 45, 46, 47
    sXM0, sWM0, sWSTEP, sCOL, sISF = 48, 49, 50, 51, 52
    vLANE = 1
    vXD = 8
    vWD = 10
    vXA = 13
    vWA = 17
    vG = 20
    vBIAS = 21
    vGX = 24
    vXF = 48
    vWF = 56
    vACC = 80
    E("s_cmp_ge_u32 s2, 256")
    E("s_cbranch_scc1 K1_END")
    E("s_load_dwordx4 s[4:7], s[0:1], 0")
    E("s_load_dwordx4 s[8:11], s[0:1], 32")
    E("s_load_dwordx2 s[12:13], s[0:1], 56")
    E("s_load_dwordx2 s[14:15], s[0:1], 80")
    E(f"v_and_b32 v{vLANE}, 63, v0")
    E("v_lshrrev_b32 v2, 6, v0")
    E("s_nop 0")
    E(f"v_readfirstlane_b32 s{sW}, v2")
    E(f"s_and_b32 s{sT0}, s2, 7")
    E(f"s_lshr_b32 s{sT1}, s2, 3")
    E(f"s_and_b32 s{sMT}, s{sT0}, 1")
    E(f"s_lshl_b32 s{sMT}, s{sMT}, 3")
    E(f"s_and_b32 s{sT2}, s{sT1}, 7")
    E(f"s_add_u32 s{sMT}, s{sMT}, s{sT2}")
    E(f"s_lshr_b32 s{sNT}, s{sT0}, 1")
    E(f"s_lshl_b32 s{sNT}, s{sNT}, 2")
    E(f"s_lshr_b32 s{sT2}, s{sT1}, 3")
    E(f"s_add_u32 s{sNT}, s{sNT}, s{sT2}")
    for t in range(2):
        E(f"s_lshl_b32 s{sT0}, s{sW}, 4")
        E(f"s_add_u32 s{sT0}, s{sT0}, {8*t}")
        E(f"v_lshrrev_b32 v2, 3, v{vLANE}")
        E(f"v_add_u32 v2, s{sT0}, v2")
        E(f"v_lshrrev_b32 v3, 1, v2")
        E(f"v_and_b32 v3, 7, v3")
        E(f"v_and_b32 v4, 7, v{vLANE}")
        E(f"v_xor_b32 v3, v3, v4")
        E(f"s_lshl_b32 s{sT0}, s{sMT}, 7")
        E(f"v_add_u32 v2, s{sT0}, v2")
        E(f"v_lshlrev_b32 v2, 10, v2")
        E(f"v_lshl_add_u32 v{vXD+t}, v3, 4, v2")
    E(f"s_cmp_ge_u32 s{sNT}, 8")
    E(f"s_cselect_b32 s{sISF}, 1, 0")
    E(f"s_mov_b32 s{sT1}, 3072")
    E(f"s_cselect_b32 s{sRS}, 2752, s{sT1}")
    E(f"s_and_b32 s{sT0}, s{sNT}, 7")
    E(f"s_mul_i32 s{sN0}, s{sT0}, 192")
    E(f"s_lshl_b32 s{sWSTEP}, s{sRS}, 6")
    for t in range(3):
        E(f"s_mul_i32 s{sT0}, s{sW}, 192")
        E(f"s_add_u32 s{sT0}, s{sT0}, {64*t}")
        E(f"v_add_u32 v2, s{sT0}, v{vLANE}")
        E(f"v_mul_u32_u24 v3, 2731, v2")
        E(f"v_lshrrev_b32 v3, 16, v3")
        E(f"v_mul_u32_u24 v4, 24, v3")
        E(f"v_sub_u32 v4, v2, v4")
        E(f"v_lshlrev_b32 v5, 1, v3")
        E(f"v_and_b32 v5, 4, v5")
        E(f"v_xor_b32 v4, v4, v5")
        E(f"v_mul_lo_u32 v3, v3, s{sRS}")
        E(f"v_lshl_add_u32 v3, v4, 4, v3")
        E(f"s_lshl_b32 s{sT0}, s{sN0}, 1")
        E(f"v_add_u32 v{vWD+t}, s{sT0}, v3")
    E(f"s_lshl_b32 s{sXM0}, s{sW}, 11")
    E(f"s_mul_i32 s{sWM0}, s{sW}, 3072")
    E(f"s_add_u32 s{sWM0}, s{sWM0}, {XB}")
    E(f"s_lshr_b32 s{sT0}, s{sW}, 2")
    E(f"s_mul_i32 s{sT0}, s{sT0}, 96")
    E(f"s_add_u32 s{sCOL}, s{sN0}, s{sT0}")
    E("s_waitcnt lgkmcnt(0)")
    E.stamp()
    make_srd(E, S_X, 4, 2048 * 1024)
    E(f"s_cmp_lg_u32 s{sISF}, 0")
    E(f"s_cselect_b32 s{S_W}, s8, s6")
    E(f"s_cselect_b32 s{sT0}, s9, s7")
    E(f"s_and_b32 s{S_W+1}, s{sT0}, 0xffff")
    E(f"s_lshl_b32 s{S_W+2}, s{sRS}, 9")
    E(f"s_mov_b32 s{S_W+3}, 0x00020000")

    def dma(st, j):
        slot = st % 4
        if j < 2:
            E(f"s_mov_b32 s{sT0}, {st*128}")
            E(f"s_add_u32 m0, s{sXM0}, {slot*SLOT + j*1024}")
            E("s_nop 0")
            E(f"buffer_load_dwordx4 v{vXD+j}, s[{S_X}:{S_X+3}], s{sT0} offen lds")
        else:
            t = j - 2
            E(f"s_mul_i32 s{sT0}, s{sWSTEP}, {st}")
            E(f"s_add_u32 m0, s{sWM0}, {slot*SLOT + t*1024}")
            E("s_nop 0")
            E(f"buffer_load_dwordx4 v{vWD+t}, s[{S_W}:{S_W+3}], s{sT0} offen lds")
        vm.issue(("st", st))
    for st in range(3):
        for j in range(5):
            dma(st, j)
    make_srd(E, S_WS, 14, WS_SIZE)
    make_srd(E, S_B1, 10, 1376 * 2)
    make_srd(E, S_GW, 12, 1024)
    E(f"s_lshl_b32 s{sT0}, s2, 3")
    E(f"s_add_u32 s{sT0}, s{sT0}, s{sW}")
    E(f"s_lshl_b32 s{sT0}, s{sT0}, 10")
    E(f"v_lshlrev_b32 v2, 4, v{vLANE}")
    E(f"buffer_load_dwordx4 v[{vGX}:{vGX+3}], v2, s[{S_X}:{S_X+3}], s{sT0} offen"); vm.issue("misc")
    E(f"buffer_load_dwordx4 v[{vGX+4}:{vGX+7}], v2, s[{S_GW}:{S_GW+3}], 0 offen"); vm.issue("misc")
    E(f"v_lshlrev_b32 v2, 1, v{vLANE}")
    E(f"v_cmp_gt_u32 vcc, 32, v{vLANE}")
    E(f"v_mov_b32 v3, 0x7fff0000")
    E(f"s_lshl_b32 s{sT0}, s{sCOL}, 1")
    E(f"v_cndmask_b32 v2, v3, v2, vcc")
    for b in range(3):
        E(f"buffer_load_ushort v{vBIAS+b}, v2, s[{S_B1}:{S_B1+3}], s{sT0} offen offset:{64*b}"); vm.issue("misc")
    E.stamp()
    E(f"s_and_b32 s{sT0}, s{sW}, 3")
    E(f"s_lshl_b32 s{sT0}, s{sT0}, 5")
    E(f"v_and_b32 v2, 31, v{vLANE}")
    E(f"v_add_u32 v2, s{sT0}, v2")
    E(f"v_lshrrev_b32 v3, 1, v2")
    E(f"v_and_b32 v3, 7, v3")
    E(f"v_lshrrev_b32 v4, 5, v{vLANE}")
    E(f"v_lshlrev_b32 v2, 7, v2")
    for t in range(4):
        E(f"v_add_u32 v5, {2*t}, v4")
        E(f"v_xor_b32 v5, v5, v3")
        E(f"v_lshl_add_u32 v{vXA+t}, v5, 4, v2")
    E(f"v_lshrrev_b32 v2, 5, v{vLANE}")
    E(f"v_lshlrev_b32 v2, 3, v2")
    E(f"v_bfe_u32 v3, v{vLANE}, 2, 2")
    E(f"v_add_u32 v2, v2, v3")
    E(f"v_mul_u32_u24 v2, 384, v2")
    E(f"v_and_b32 v4, 1, v{vLANE}")
    E(f"v_lshl_add_u32 v2, v4, 3, v2")
    E(f"v_add_u32 v2, {XB}, v2")
    E(f"v_bfe_u32 v4, v{vLANE}, 4, 1")
    E(f"v_lshlrev_b32 v4, 1, v4")
    E(f"v_bfe_u32 v5, v{vLANE}, 1, 1")
    E(f"v_add_u32 v4, v4, v5")
    E(f"v_lshlrev_b32 v3, 1, v3")
    E(f"v_and_b32 v3, 4, v3")
    E(f"s_lshr_b32 s{sT0}, s{sW}, 2")
    E(f"s_mul_i32 s{sT0}, s{sT0}, 12")
    for b in range(3):
        E(f"v_add_u32 v5, s{sT0}, v4")
        E(f"v_add_u32 v5, {4*b}, v5")
        E(f"v_xor_b32 v5, v5, v3")
        E(f"v_lshl_add_u32 v{vWA+b}, v5, 4, v2")
    for i in range(48):
        E(f"v_mov_b32 v{vACC+i}, 0")
    E.stamp()
    E(f"s_cmp_lg_u32 s{sISF}, 0")
    E("s_cbranch_scc1 K1_TTT")
    E(f"s_cmp_ge_u32 s{sCOL}, 1024")
    E("s_cbranch_scc1 K1_NNN")
    E(f"s_cmp_eq_u32 s{sCOL}, 960")
    E("s_cbranch_scc1 K1_TTN")
    E("s_branch K1_TTT")

    def frag_reads(t, buf):
        E(f"ds_read_b128 v[{vXF+4*buf}:{vXF+4*buf+3}], v{vXA+t}")
        for b in range(3):
            for e in range(2):
                off = (16 * t + 4 * e) * 384
                d = vWF + 12 * buf + 4 * b + 2 * e
                E(f"ds_read_b64_tr_b16 v[{d}:{d+1}], v{vWA+b} offset:{off}")

    snap = vm.snap()
    def main_loop(pat):
        E.nstamp = 3
        vm.restore(snap)
        for st in range(NST):
            vm.wait(("st", st))
            E("s_barrier")
            E.stamp()
            if st > 0:
                delta = SLOT if (st % 4) != 0 else -3 * SLOT
                for r in list(range(vXA, vXA + 4)) + list(range(vWA, vWA + 3)):
                    if delta > 0:
                        E(f"v_add_u32 v{r}, {delta}, v{r}")
                    else:
                        E(f"v_subrev_u32 v{r}, {-delta}, v{r}")
            frag_reads(0, 0)
            sched = {0: [0], 1: [1, 2], 2: [3], 3: [4]}
            for t in range(4):
                buf = t & 1
                if t < 3:
                    frag_reads(t + 1, buf ^ 1)
                    E("s_waitcnt lgkmcnt(7)")
                else:
                    E("s_waitcnt lgkmcnt(0)")
                for b in range(3):
                    xf = f"v[{vXF+4*buf}:{vXF+4*buf+3}]"
                    wf = f"v[{vWF+12*buf+4*b}:{vWF+12*buf+4*b+3}]"
                    acc = f"v[{vACC+16*b}:{vACC+16*b+15}]"
                    if pat[b] == 'T':
                        E(f"v_mfma_f32_32x32x16_bf16 {acc}, {wf}, {xf}, {acc}")
                    else:
                        E(f"v_mfma_f32_32x32x16_bf16 {acc}, {xf}, {wf}, {acc}")
                if st + 3 < NST:
                    for j in sched[t]:
                        dma(st + 3, j)
    for pat in ("TTT", "TTN", "NNN"):
        E.label(f"K1_{pat}")
        main_loop(pat)
        E("s_branch K1_EPI")

    E.label("K1_EPI")
    vR, vH, vT = 2, 3, 4
    E(f"v_and_b32 v{vR}, 31, v{vLANE}")
    E(f"v_lshrrev_b32 v{vH}, 5, v{vLANE}")
    sROW = sT1
    E(f"s_and_b32 s{sT0}, s{sW}, 3")
    E(f"s_lshl_b32 s{sT0}, s{sT0}, 5")
    E(f"s_lshl_b32 s{sROW}, s{sMT}, 7")
    E(f"s_add_u32 s{sROW}, s{sROW}, s{sT0}")
    E(f"s_cmp_lg_u32 s{sISF}, 0")
    E("s_cbranch_scc1 K1_EPI_FFN")
    E("s_nop 15")
    E.stamp()
    P = vXF
    for b in range(3):
        acc = vACC + 16 * b
        E(f"s_add_u32 s{sT0}, s{sCOL}, {32*b}")
        E(f"s_lshr_b32 s{sT2}, s{sT0}, 9")
        E(f"s_and_b32 s{sT0}, s{sT0}, 511")
        E(f"s_lshr_b32 s{sT0}, s{sT0}, 4")
        E(f"s_cmp_eq_u32 s{sT2}, 1")
        E(f"s_cbranch_scc1 K1_EK{b}")
        E(f"s_cmp_eq_u32 s{sT2}, 2")
        E(f"s_cbranch_scc1 K1_EV{b}")
        for i in range(16):
            E(f"v_mul_f32 v{acc+i}, {hex(f32bits(QSCALE))}, v{acc+i}")
        for i in range(8):
            E(f"v_cvt_pk_bf16_f32 v{P+i}, v{acc+2*i}, v{acc+2*i+1}")
        E(f"v_add_u32 v{vT}, s{sROW}, v{vR}")
        E(f"v_lshlrev_b32 v{vT}, 5, v{vT}")
        E(f"v_lshl_add_u32 v{vT}, v{vH}, 4, v{vT}")
        E(f"s_lshl_b32 s{sT0}, s{sT0}, 16")
        E(f"s_add_u32 s{sT0}, s{sT0}, {WS_Q}")
        E(f"buffer_store_dwordx4 v[{P}:{P+3}], v{vT}, s[{S_WS}:{S_WS+3}], s{sT0} offen")
        E(f"s_add_u32 s{sT0}, s{sT0}, 65536")
        E(f"buffer_store_dwordx4 v[{P+4}:{P+7}], v{vT}, s[{S_WS}:{S_WS+3}], s{sT0} offen")
        E(f"s_branch K1_EN{b}")
        E.label(f"K1_EK{b}")
        for i in range(8):
            E(f"v_cvt_pk_bf16_f32 v{P+i}, v{acc+2*i}, v{acc+2*i+1}")
        E(f"v_lshlrev_b32 v{vT}, 4, v{vR}")
        E(f"v_lshl_add_u32 v{vT}, v{vH}, 9, v{vT}")
        E(f"s_lshl_b32 s{sT0}, s{sT0}, 16")
        E(f"s_lshl_b32 s{sT2}, s{sROW}, 5")
        E(f"s_add_u32 s{sT0}, s{sT0}, s{sT2}")
        E(f"s_add_u32 s{sT0}, s{sT0}, {WS_K}")
        E(f"buffer_store_dwordx4 v[{P}:{P+3}], v{vT}, s[{S_WS}:{S_WS+3}], s{sT0} offen")
        E(f"s_add_u32 s{sT0}, s{sT0}, 65536")
        E(f"buffer_store_dwordx4 v[{P+4}:{P+7}], v{vT}, s[{S_WS}:{S_WS+3}], s{sT0} offen")
        E(f"s_branch K1_EN{b}")
        E.label(f"K1_EV{b}")
        for i in range(8):
            E(f"v_cvt_pk_bf16_f32 v{P+i}, v{acc+2*i}, v{acc+2*i+1}")
        E(f"v_and_b32 v{vT}, 15, v{vR}")
        E(f"v_lshlrev_b32 v{vT}, 4, v{vT}")
        E(f"v_lshl_add_u32 v{vT}, v{vH}, 8, v{vT}")
        E(f"v_lshrrev_b32 v{vT+1}, 4, v{vR}")
        E(f"v_lshl_add_u32 v{vT}, v{vT+1}, 16, v{vT}")
        E(f"s_lshl_b32 s{sT0}, s{sT0}, 16")
        E(f"s_lshl_b32 s{sT2}, s{sROW}, 5")
        E(f"s_add_u32 s{sT0}, s{sT0}, s{sT2}")
        E(f"s_add_u32 s{sT0}, s{sT0}, {WS_V}")
        E(f"buffer_store_dwordx4 v[{P}:{P+3}], v{vT}, s[{S_WS}:{S_WS+3}], s{sT0} offen")
        E(f"buffer_store_dwordx4 v[{P+4}:{P+7}], v{vT}, s[{S_WS}:{S_WS+3}], s{sT0} offen offset:512")
        E.label(f"K1_EN{b}")
        E("s_nop 1")
    E("s_branch K1_GATE")

    E.label("K1_EPI_FFN")
    B = vXF
    X = vXF + 16
    E(f"v_cmp_gt_u32 vcc, 32, v{vLANE}")
    E(f"v_mov_b32 v{B}, 0x3f80")
    for i in range(1, 4):
        E(f"v_mov_b32 v{B+i}, 0")
    E(f"v_cndmask_b32 v{B}, 0, v{B}, vcc")
    for i in range(1, 4):
        E(f"v_mov_b32 v{B+4+i}, 0")
    for b in range(3):
        acc = f"v[{vACC+16*b}:{vACC+16*b+15}]"
        E(f"v_mov_b32 v{B+4}, v{vBIAS+b}")
        E("s_nop 1")
        E(f"v_mfma_f32_32x32x16_bf16 {acc}, v[{B+4}:{B+7}], v[{B}:{B+3}], {acc}")
    E(f"v_add_u32 v{vT}, s{sROW}, v{vR}")
    E(f"v_mul_u32_u24 v{vT}, 2752, v{vT}")
    E(f"v_lshl_add_u32 v{vT}, v{vH}, 4, v{vT}")
    E(f"s_mov_b32 s60, {hex(f32bits(LOG2E))}")
    E(f"s_mov_b32 s61, s60")
    E(f"s_mov_b32 s62, 2.0")
    E(f"s_mov_b32 s63, 2.0")
    E("s_nop 15")
    E.nstamp = 11
    E.stamp()
    for b in range(3):
        acc = vACC + 16 * b
        E(f"s_add_u32 s{sT0}, s{sCOL}, {32*b}")
        E(f"s_cmp_ge_u32 s{sT0}, 1376")
        E(f"s_cbranch_scc1 K1_GATE")
        for i in range(0, 16, 2):
            E(f"v_pk_mul_f32 v[{X+i}:{X+i+1}], v[{acc+i}:{acc+i+1}], s[60:61]")
        for i in range(16):
            E(f"v_min_f32 v{X+i}, 0x42200000, v{X+i}")
        for i in range(16):
            E(f"v_exp_f32 v{X+i}, v{X+i}")
        for i in range(0, 16, 2):
            E(f"v_pk_add_f32 v[{B+i}:{B+i+1}], v[{X+i}:{X+i+1}], s[62:63]")
        for i in range(0, 16, 2):
            E(f"v_pk_mul_f32 v[{X+i}:{X+i+1}], v[{X+i}:{X+i+1}], v[{B+i}:{B+i+1}]")
        for i in range(0, 16, 2):
            E(f"v_pk_add_f32 v[{B+i}:{B+i+1}], v[{X+i}:{X+i+1}], s[62:63]")
        for i in range(16):
            E(f"v_rcp_f32 v{B+i}, v{B+i}")
        for i in range(0, 16, 2):
            E(f"v_pk_mul_f32 v[{X+i}:{X+i+1}], v[{X+i}:{X+i+1}], v[{acc+i}:{acc+i+1}]")
        for i in range(0, 16, 2):
            E(f"v_pk_mul_f32 v[{X+i}:{X+i+1}], v[{X+i}:{X+i+1}], v[{B+i}:{B+i+1}]")
        for i in range(8):
            E(f"v_cvt_pk_bf16_f32 v{B+i}, v{X+2*i}, v{X+2*i+1}")
        E(f"s_lshl_b32 s{sT0}, s{sT0}, 1")
        E(f"s_add_u32 s{sT0}, s{sT0}, {WS_ACT}")
        E(f"buffer_store_dwordx4 v[{B}:{B+3}], v{vT}, s[{S_WS}:{S_WS+3}], s{sT0} offen")
        E(f"buffer_store_dwordx4 v[{B+4}:{B+7}], v{vT}, s[{S_WS}:{S_WS+3}], s{sT0} offen offset:32")
        E("s_nop 1")
    E.label("K1_GATE")
    a = vGX; w = vGX + 4; t0 = vGX + 8
    for d in range(4):
        E(f"v_lshlrev_b32 v{t0}, 16, v{a+d}")
        E(f"v_lshlrev_b32 v{t0+1}, 16, v{w+d}")
        E(f"v_and_b32 v{t0+2}, 0xffff0000, v{a+d}")
        E(f"v_and_b32 v{t0+3}, 0xffff0000, v{w+d}")
        E(f"v_mul_f32 v{t0}, v{t0}, v{t0+1}")
        E(f"v_mul_f32 v{t0+2}, v{t0+2}, v{t0+3}")
        E(f"v_cvt_pk_bf16_f32 v{t0}, v{t0}, v{t0+2}")
        E(f"v_lshlrev_b32 v{t0+1}, 16, v{t0}")
        E(f"v_and_b32 v{t0+2}, 0xffff0000, v{t0}")
        if d == 0:
            E(f"v_add_f32 v{vG}, v{t0+1}, v{t0+2}")
        else:
            E(f"v_add_f32 v{vG}, v{vG}, v{t0+1}")
            E(f"v_add_f32 v{vG}, v{vG}, v{t0+2}")
    for m in (1, 2, 4, 8, 16, 32):
        E(f"v_xor_b32 v{t0}, {m}, v{vLANE}")
        E(f"v_lshlrev_b32 v{t0}, 2, v{t0}")
        E(f"ds_bpermute_b32 v{t0+1}, v{t0}, v{vG}")
        E("s_waitcnt lgkmcnt(0)")
        E(f"v_add_f32 v{vG}, v{vG}, v{t0+1}")
    E(f"v_cvt_pk_bf16_f32 v{vG}, v{vG}, v{vG}")
    E(f"v_lshlrev_b32 v{vG}, 16, v{vG}")
    E(f"v_mul_f32 v{vG}, {hex(f32bits(-LOG2E))}, v{vG}")
    E(f"v_exp_f32 v{vG}, v{vG}")
    E("s_nop 0")
    E(f"v_add_f32 v{vG}, 1.0, v{vG}")
    E(f"v_rcp_f32 v{vG}, v{vG}")
    E("s_nop 0")
    E(f"v_cvt_pk_bf16_f32 v{vG}, v{vG}, v{vG}")
    E(f"v_lshlrev_b32 v{vG}, 16, v{vG}")
    E.nstamp = 12
    E.stamp()
    E.dump_stamps(S_WS, sW, 0)
    E(f"s_lshl_b32 s{sT0}, s2, 3")
    E(f"s_add_u32 s{sT0}, s{sT0}, s{sW}")
    E(f"s_lshl_b32 s{sT0}, s{sT0}, 2")
    E(f"s_add_u32 s{sT0}, s{sT0}, {WS_G}")
    E(f"v_mov_b32 v2, 0")
    E(f"v_cmp_eq_u32 vcc, 0, v{vLANE}")
    E("s_and_saveexec_b64 s[64:65], vcc")
    E(f"buffer_store_dword v{vG}, v2, s[{S_WS}:{S_WS+3}], s{sT0} offen")
    E("s_mov_b64 exec, s[64:65]")
    E.label("K1_END")
    E("s_endpgm")
    return name, 128

def gen_k2(E):
    name = "k2_attn_kernel"
    kernel_start(E, name)
    S_WS = 20
    sW, sH, sQB, sT0, sT1, sPASS, sIT = 40, 41, 42, 43, 44, 45, 46
    vLANE = 1
    vKA, vVA = 4, 5
    vDMA = 6
    vQ = 8
    vKF = 12
    vVF = 20
    vP = 36
    vS = 48
    vC = 80
    vO = 96
    vT = 112
    E("s_cmp_ge_u32 s2, 256")
    E("s_cbranch_scc1 K2_END")
    E("s_load_dwordx2 s[14:15], s[0:1], 80")
    E(f"v_and_b32 v{vLANE}, 63, v0")
    E("v_lshrrev_b32 v2, 6, v0")
    E("s_nop 0")
    E(f"v_readfirstlane_b32 s{sW}, v2")
    E(f"s_and_b32 s{sT0}, s2, 7")
    E(f"s_lshl_b32 s{sH}, s{sT0}, 2")
    E(f"s_lshr_b32 s{sT0}, s2, 6")
    E(f"s_add_u32 s{sH}, s{sH}, s{sT0}")
    E(f"s_lshr_b32 s{sQB}, s2, 3")
    E(f"s_and_b32 s{sQB}, s{sQB}, 7")
    E("s_waitcnt lgkmcnt(0)")
    E.stamp()
    make_srd(E, S_WS, 14, WS_SIZE)
    E(f"v_and_b32 v2, 31, v{vLANE}")
    E(f"v_lshrrev_b32 v3, 5, v{vLANE}")
    E(f"v_lshlrev_b32 v2, 5, v2")
    E(f"v_lshl_add_u32 v2, v3, 4, v2")
    E(f"s_lshl_b32 s{sT0}, s{sH}, 11")
    E(f"s_lshl_b32 s{sT1}, s{sQB}, 8")
    E(f"s_add_u32 s{sT0}, s{sT0}, s{sT1}")
    E(f"s_lshl_b32 s{sT1}, s{sW}, 5")
    E(f"s_add_u32 s{sT0}, s{sT0}, s{sT1}")
    E(f"s_lshl_b32 s{sT0}, s{sT0}, 5")
    E(f"s_add_u32 s{sT0}, s{sT0}, {WS_Q}")
    E(f"buffer_load_dwordx4 v[{vQ}:{vQ+3}], v2, s[{S_WS}:{S_WS+3}], s{sT0} offen")
    E(f"v_lshlrev_b32 v{vDMA}, 4, v{vLANE}")
    E(f"s_lshl_b32 s{sT1}, s{sW}, 10")
    E(f"s_lshl_b32 s{sT0}, s{sH}, 16")
    E(f"s_add_u32 s{sT0}, s{sT0}, s{sT1}")
    E(f"s_mov_b32 s48, s{sT1}")
    E(f"s_add_u32 s49, s{sT0}, {WS_K}")
    def dma_chunk():
        E(f"s_mov_b32 m0, s48")
        E(f"s_add_u32 s50, s49, {WS_V - WS_K}")
        E(f"buffer_load_dwordx4 v{vDMA}, s[{S_WS}:{S_WS+3}], s49 offen lds")
        E(f"s_add_u32 m0, s48, 65536")
        E(f"s_add_u32 s48, s48, 8192")
        E(f"buffer_load_dwordx4 v{vDMA}, s[{S_WS}:{S_WS+3}], s50 offen lds")
        E(f"s_add_u32 s49, s49, 8192")
    dma_chunk()
    E(f"v_and_b32 v2, 31, v{vLANE}")
    E(f"v_cmp_eq_u32 vcc, 16, v2")
    E(f"v_mov_b32 v3, 0x3f803f80")
    E("s_nop 0")
    E(f"v_cndmask_b32 v3, 0, v3, vcc")
    for i in range(16):
        E(f"v_mov_b32 v{vVF+i}, v3")
    E("s_mov_b32 s52, 0x0000ffff")
    E("s_mov_b32 s53, 0x0000ffff")
    E(f"s_mov_b32 s{sPASS}, 0")
    E.stamp()
    E("s_waitcnt vmcnt(0)")
    E("s_barrier")
    E.stamp()
    E(f"v_lshlrev_b32 v{vKA}, 4, v{vLANE}")
    E(f"ds_read_b128 v[{vKF}:{vKF+3}], v{vKA}")
    E("s_waitcnt lgkmcnt(0)")
    E(f"v_mfma_f32_32x32x16_bf16 v[{vS}:{vS+15}], v[{vKF}:{vKF+3}], v[{vQ}:{vQ+3}], 0")
    E("s_nop 15")
    def rowmax16(src, dst):
        E(f"v_max3_f32 v{dst}, v{src}, v{src+1}, v{src+2}")
        for i in range(3, 15, 2):
            E(f"v_max3_f32 v{dst}, v{dst}, v{src+i}, v{src+i+1}")
        E(f"v_max_f32 v{dst}, v{dst}, v{src+15}")
    def cross_half_max(reg):
        E(f"v_mov_b32 v{vT+1}, v{reg}")
        E(f"v_mov_b32 v{vT+2}, v{reg}")
        E("s_nop 1")
        E(f"v_permlane32_swap_b32 v{vT+1}, v{vT+2}")
        E("s_nop 1")
        E(f"v_max_f32 v{reg}, v{vT+1}, v{vT+2}")
    rowmax16(vS, vT)
    cross_half_max(vT)
    E.label("K2_RUN")
    for i in range(16):
        E(f"v_sub_f32 v{vC+i}, 0, v{vT}")
    for i in range(16):
        E(f"v_mov_b32 v{vO+i}, 0")
    E(f"v_lshlrev_b32 v{vKA}, 4, v{vLANE}")
    E(f"v_and_b32 v2, 31, v{vLANE}")
    E(f"v_lshrrev_b32 v3, 5, v{vLANE}")
    E(f"v_lshlrev_b32 v2, 4, v2")
    E(f"v_lshl_add_u32 v2, v3, 8, v2")
    E(f"v_add_u32 v{vVA}, 65536, v2")
    X_NOLDS = int(os.environ.get("X_NOLDS", "0"))
    X_NOEXEC = int(os.environ.get("X_NOEXEC", "0"))
    def rdK(buf, tile_off):
        if X_NOLDS: return
        E(f"ds_read_b128 v[{vKF+4*buf}:{vKF+4*buf+3}], v{vKA} offset:{tile_off*1024}")
    def rdV(buf, tile_off):
        if X_NOLDS: return
        if not X_NOEXEC: E("s_mov_b64 exec, s[52:53]")
        E(f"ds_read_b128 v[{vVF+8*buf}:{vVF+8*buf+3}], v{vVA} offset:{tile_off*1024}")
        E(f"ds_read_b128 v[{vVF+8*buf+4}:{vVF+8*buf+7}], v{vVA} offset:{tile_off*1024+512}")
        if not X_NOEXEC: E("s_mov_b64 exec, -1")
    def qk(sbuf, kbuf):
        E(f"v_mfma_f32_32x32x16_bf16 v[{vS+16*sbuf}:{vS+16*sbuf+15}], v[{vKF+4*kbuf}:{vKF+4*kbuf+3}], v[{vQ}:{vQ+3}], v[{vC}:{vC+15}]")
    rdK(0, 0); rdK(1, 1); rdV(0, 0)
    E("s_waitcnt lgkmcnt(3)")
    qk(0, 0)
    E(f"s_mov_b32 s{sIT}, 0")
    E.label("K2_LOOP")
    E(f"s_cmp_lg_u32 s{sPASS}, 0")
    E("s_cbranch_scc1 K2_NODMA")
    E(f"s_cmp_ge_u32 s{sIT}, 7")
    E("s_cbranch_scc1 K2_NODMA")
    dma_chunk()
    E.label("K2_NODMA")
    for half in range(2):
        X = half; Y = half ^ 1
        E("s_waitcnt lgkmcnt(2)")
        qk(Y, Y)
        rdK(X, half + 2)
        s = vS + 16 * X
        for i in range(8):
            E(f"v_exp_f32 v{s+i}, v{s+i}")
        for i in range(4):
            E(f"v_cvt_pk_bf16_f32 v{vP+i}, v{s+2*i}, v{s+2*i+1}")
        E("s_waitcnt lgkmcnt(1)")
        for i in range(8, 10):
            E(f"v_exp_f32 v{s+i}, v{s+i}")
        E(f"v_mfma_f32_32x32x16_bf16 v[{vO}:{vO+15}], v[{vVF+8*X}:{vVF+8*X+3}], v[{vP}:{vP+3}], v[{vO}:{vO+15}]")
        for i in range(10, 16):
            E(f"v_exp_f32 v{s+i}, v{s+i}")
        for i in range(4, 8):
            E(f"v_cvt_pk_bf16_f32 v{vP+i}, v{s+2*i}, v{s+2*i+1}")
        rdV(Y, half + 1)
        E(f"v_mfma_f32_32x32x16_bf16 v[{vO}:{vO+15}], v[{vVF+8*X+4}:{vVF+8*X+7}], v[{vP+4}:{vP+7}], v[{vO}:{vO+15}]")
    E(f"v_add_u32 v{vKA}, 2048, v{vKA}")
    E(f"v_add_u32 v{vVA}, 2048, v{vVA}")
    E(f"s_add_u32 s{sIT}, s{sIT}, 1")
    E(f"s_cmp_lg_u32 s{sPASS}, 0")
    E("s_cbranch_scc1 K2_NOBAR")
    E(f"s_cmp_eq_u32 s{sIT}, 3")
    E("s_cbranch_scc0 K2_B2")
    E.stamp()
    E("s_waitcnt vmcnt(4)")
    E("s_barrier")
    E.stamp()
    E("s_branch K2_NOBAR")
    E.label("K2_B2")
    E(f"s_cmp_eq_u32 s{sIT}, 7")
    E("s_cbranch_scc0 K2_B3")
    E("s_waitcnt vmcnt(8)")
    E("s_barrier")
    E("s_branch K2_NOBAR")
    E.label("K2_B3")
    E(f"s_cmp_eq_u32 s{sIT}, 15")
    E("s_cbranch_scc0 K2_NOBAR")
    E("s_waitcnt vmcnt(0)")
    E("s_barrier")
    E.label("K2_NOBAR")
    E(f"s_cmp_lt_u32 s{sIT}, 32")
    E("s_cbranch_scc1 K2_LOOP")
    E("s_waitcnt lgkmcnt(0)")
    E("s_nop 15")
    E.stamp()
    E(f"v_mov_b32 v{vT+1}, v{vO+8}")
    E(f"v_mov_b32 v{vT+2}, v{vO+8}")
    E("s_nop 1")
    E(f"v_permlane32_swap_b32 v{vT+1}, v{vT+2}")
    E(f"s_cmp_lg_u32 s{sPASS}, 0")
    E("s_cbranch_scc1 K2_FIN")
    E(f"v_max3_f32 v{vT+3}, |v{vO}|, |v{vO+1}|, |v{vO+2}|")
    E(f"v_max3_f32 v{vT+3}, v{vT+3}, |v{vO+3}|, |v{vO+4}|")
    E(f"v_max3_f32 v{vT+3}, v{vT+3}, |v{vO+5}|, |v{vO+6}|")
    E(f"v_max_f32 v{vT+3}, v{vT+3}, |v{vO+7}|")
    E(f"s_mov_b32 s54, 0x5d800000")
    E(f"s_mov_b32 s55, 0x7f000000")
    E(f"v_cmp_nlt_f32 vcc, v{vT+1}, s54")
    E(f"v_cmp_nlt_f32 s[56:57], v{vT+3}, s55")
    E("s_nop 1")
    E("s_or_b64 vcc, vcc, s[56:57]")
    E("s_cbranch_vccz K2_FIN")
    E(f"v_lshlrev_b32 v{vKA}, 4, v{vLANE}")
    E(f"v_mov_b32 v{vT}, 0xff800000")
    E(f"s_mov_b32 s{sIT}, 0")
    E.label("K2_MAXLOOP")
    E(f"ds_read_b128 v[{vKF}:{vKF+3}], v{vKA}")
    E("s_waitcnt lgkmcnt(0)")
    E(f"v_mfma_f32_32x32x16_bf16 v[{vS}:{vS+15}], v[{vKF}:{vKF+3}], v[{vQ}:{vQ+3}], 0")
    E("s_nop 15")
    for i in range(0, 16, 2):
        E(f"v_max3_f32 v{vT}, v{vT}, v{vS+i}, v{vS+i+1}")
    E(f"v_add_u32 v{vKA}, 1024, v{vKA}")
    E(f"s_add_u32 s{sIT}, s{sIT}, 1")
    E(f"s_cmp_lt_u32 s{sIT}, 64")
    E("s_cbranch_scc1 K2_MAXLOOP")
    cross_half_max(vT)
    E(f"s_mov_b32 s{sPASS}, 1")
    E("s_branch K2_RUN")
    E.label("K2_FIN")
    E(f"v_rcp_f32 v{vT+1}, v{vT+1}")
    E("s_nop 0")
    for i in range(8):
        E(f"v_mul_f32 v{vO+i}, v{vO+i}, v{vT+1}")
    for i in range(4):
        E(f"v_cvt_pk_bf16_f32 v{vP+i}, v{vO+2*i}, v{vO+2*i+1}")
    E(f"v_and_b32 v2, 31, v{vLANE}")
    E(f"v_lshrrev_b32 v3, 5, v{vLANE}")
    E(f"v_lshlrev_b32 v2, 10, v2")
    E(f"v_lshl_add_u32 v2, v3, 4, v2")
    E(f"s_lshl_b32 s{sT0}, s{sQB}, 8")
    E(f"s_lshl_b32 s{sT1}, s{sW}, 5")
    E(f"s_add_u32 s{sT0}, s{sT0}, s{sT1}")
    E(f"s_lshl_b32 s{sT0}, s{sT0}, 10")
    E(f"s_lshl_b32 s{sT1}, s{sH}, 5")
    E(f"s_add_u32 s{sT0}, s{sT0}, s{sT1}")
    E(f"s_add_u32 s{sT0}, s{sT0}, {WS_O}")
    E(f"buffer_store_dwordx4 v[{vP}:{vP+3}], v2, s[{S_WS}:{S_WS+3}], s{sT0} offen")
    E.stamp()
    E.dump_stamps(S_WS, sW, 1)
    E.label("K2_END")
    E("s_endpgm")
    return name, 128

def gen_k3(E):
    name = "k3_out_kernel"
    kernel_start(E, name)
    vm = VM(E)
    NS = 9; SLOT = 16384; AB = 8192
    S_WS, S_WO, S_W2, S_OUT = 20, 24, 28, 32
    sW, sMT, sNT, sT0, sT1, sAM0, sBM0, sROW, sKH, sWQ = 40, 41, 42, 43, 44, 45, 46, 47, 48, 49
    vLANE = 1
    vAD1 = 8
    vAD2 = 9
    vBD = 10
    vAA = 12
    vBA = 14
    vG = 15
    vAF = 24
    vBF = 32
    vACC1 = 48
    vACC2 = 64
    vT = 80
    E("s_cmp_ge_u32 s2, 256")
    E("s_cbranch_scc1 K3_END")
    E("s_load_dwordx2 s[4:5], s[0:1], 16")
    E("s_load_dwordx2 s[6:7], s[0:1], 48")
    E("s_load_dwordx2 s[8:9], s[0:1], 64")
    E("s_load_dwordx2 s[14:15], s[0:1], 80")
    E(f"v_and_b32 v{vLANE}, 63, v0")
    E("v_lshrrev_b32 v2, 6, v0")
    E("s_nop 0")
    E(f"v_readfirstlane_b32 s{sW}, v2")
    E(f"s_and_b32 s{sT0}, s2, 7")
    E(f"s_lshr_b32 s{sT1}, s2, 3")
    E(f"s_lshl_b32 s{sMT}, s{sT0}, 2")
    E(f"s_and_b32 s{sT0}, s{sT1}, 3")
    E(f"s_add_u32 s{sMT}, s{sMT}, s{sT0}")
    E(f"s_lshr_b32 s{sNT}, s{sT1}, 2")
    E(f"s_lshr_b32 s{sKH}, s{sW}, 2")
    E(f"s_and_b32 s{sWQ}, s{sW}, 3")
    E(f"s_lshl_b32 s{sT0}, s{sW}, 3")
    E(f"v_lshrrev_b32 v2, 3, v{vLANE}")
    E(f"v_add_u32 v2, s{sT0}, v2")
    E(f"v_lshrrev_b32 v3, 1, v2")
    E(f"v_and_b32 v3, 7, v3")
    E(f"v_and_b32 v4, 7, v{vLANE}")
    E(f"v_xor_b32 v3, v3, v4")
    E(f"s_lshl_b32 s{sT0}, s{sMT}, 6")
    E(f"v_add_u32 v5, s{sT0}, v2")
    E(f"v_lshlrev_b32 v6, 10, v5")
    E(f"v_lshl_add_u32 v6, v3, 4, v6")
    E(f"v_add_u32 v{vAD1}, {WS_O}, v6")
    E(f"v_mul_u32_u24 v6, 2752, v5")
    E(f"v_lshl_add_u32 v6, v3, 4, v6")
    E(f"v_add_u32 v{vAD2}, {WS_ACT}, v6")
    E(f"v_lshlrev_b32 v3, 1, v2")
    E(f"v_and_b32 v3, 4, v3")
    E(f"v_xor_b32 v3, v3, v4")
    E(f"v_lshlrev_b32 v2, 10, v2")
    E(f"v_lshl_add_u32 v2, v3, 4, v2")
    E(f"s_lshl_b32 s{sT0}, s{sNT}, 7")
    E(f"v_add_u32 v{vBD}, s{sT0}, v2")
    E(f"s_lshl_b32 s{sAM0}, s{sW}, 10")
    E(f"s_add_u32 s{sBM0}, s{sAM0}, {AB}")
    E("s_waitcnt lgkmcnt(0)")
    E.stamp()
    make_srd(E, S_WS, 14, WS_SIZE)
    make_srd(E, S_WO, 4, 512 * 1024)
    make_srd(E, S_W2, 6, 1376 * 1024)
    make_srd(E, S_OUT, 8, 2048 * 1024)
    NST = 30
    def issue_stage(st):
        slot = st % NS
        if st < 8:
            ad, bs, ka = vAD1, S_WO, st
        else:
            ad, bs, ka = vAD2, S_W2, st - 8
        E(f"s_mov_b32 s{sT0}, {ka*128}")
        E(f"s_add_u32 m0, s{sAM0}, {slot*SLOT}")
        E("s_nop 0")
        E(f"buffer_load_dwordx4 v{ad}, s[{S_WS}:{S_WS+3}], s{sT0} offen lds"); vm.issue(st)
        E(f"s_mov_b32 s{sT0}, {ka*65536}")
        E(f"s_add_u32 m0, s{sBM0}, {slot*SLOT}")
        E("s_nop 0")
        E(f"buffer_load_dwordx4 v{vBD}, s[{bs}:{bs+3}], s{sT0} offen lds"); vm.issue(st)
    PD = NS - 1
    for st in range(PD):
        issue_stage(st)
    E(f"s_and_b32 s{sT0}, s{sWQ}, 1")
    E(f"s_lshl_b32 s{sT0}, s{sT0}, 5")
    E(f"s_lshl_b32 s{sT1}, s{sMT}, 6")
    E(f"s_add_u32 s{sROW}, s{sT0}, s{sT1}")
    E(f"s_lshl_b32 s{sT0}, s{sROW}, 2")
    E(f"s_add_u32 s{sT0}, s{sT0}, {WS_G}")
    E(f"v_and_b32 v2, 31, v{vLANE}")
    E(f"v_lshlrev_b32 v2, 2, v2")
    E(f"buffer_load_dword v{vG}, v2, s[{S_WS}:{S_WS+3}], s{sT0} offen"); vm.issue("g")
    E.stamp()
    E(f"s_and_b32 s{sT0}, s{sWQ}, 1")
    E(f"s_lshl_b32 s{sT0}, s{sT0}, 5")
    E(f"v_and_b32 v2, 31, v{vLANE}")
    E(f"v_add_u32 v2, s{sT0}, v2")
    E(f"v_lshrrev_b32 v3, 1, v2")
    E(f"v_and_b32 v3, 7, v3")
    E(f"v_lshrrev_b32 v4, 5, v{vLANE}")
    E(f"v_lshlrev_b32 v2, 7, v2")
    E(f"s_lshl_b32 s{sT0}, s{sKH}, 2")
    E(f"v_add_u32 v4, s{sT0}, v4")
    for t in range(2):
        E(f"v_add_u32 v5, {2*t}, v4")
        E(f"v_xor_b32 v5, v5, v3")
        E(f"v_lshl_add_u32 v{vAA+t}, v5, 4, v2")
    E(f"v_lshrrev_b32 v2, 5, v{vLANE}")
    E(f"v_lshlrev_b32 v2, 2, v2")
    E(f"v_bfe_u32 v3, v{vLANE}, 2, 2")
    E(f"v_add_u32 v2, v2, v3")
    E(f"s_lshl_b32 s{sT0}, s{sKH}, 5")
    E(f"v_add_u32 v2, s{sT0}, v2")
    E(f"v_lshlrev_b32 v2, 7, v2")
    E(f"v_and_b32 v4, 1, v{vLANE}")
    E(f"v_lshl_add_u32 v2, v4, 3, v2")
    E(f"v_add_u32 v2, {AB}, v2")
    E(f"v_bfe_u32 v4, v{vLANE}, 4, 1")
    E(f"v_lshlrev_b32 v4, 1, v4")
    E(f"v_bfe_u32 v5, v{vLANE}, 1, 1")
    E(f"v_add_u32 v4, v4, v5")
    E(f"s_lshr_b32 s{sT0}, s{sWQ}, 1")
    E(f"s_lshl_b32 s{sT0}, s{sT0}, 2")
    E(f"v_add_u32 v4, s{sT0}, v4")
    E(f"v_lshlrev_b32 v3, 1, v3")
    E(f"v_and_b32 v3, 4, v3")
    E(f"v_xor_b32 v4, v4, v3")
    E(f"v_lshl_add_u32 v{vBA}, v4, 4, v2")
    for i in range(32):
        E(f"v_mov_b32 v{vACC1+i}, 0")
    def frag_reads(t, buf):
        E(f"ds_read_b128 v[{vAF+4*buf}:{vAF+4*buf+3}], v{vAA+t}")
        for e in range(2):
            off = (16 * t + 8 * e) * 128
            d = vBF + 4 * buf + 2 * e
            E(f"ds_read_b64_tr_b16 v[{d}:{d+1}], v{vBA} offset:{off}")
    for st in range(NST):
        vm.wait(st)
        E("s_barrier")
        if st in (0, 1, 2, 4, 8, 12, 16, 20, 24, 29): E.stamp()
        if st > 0:
            delta = SLOT if (st % NS) != 0 else -(NS - 1) * SLOT
            for r in [vAA, vAA + 1, vBA]:
                if delta > 0:
                    E(f"v_add_u32 v{r}, {delta}, v{r}")
                else:
                    E(f"v_subrev_u32 v{r}, {-delta}, v{r}")
        acc = vACC1 if st < 8 else vACC2
        if st == NST - 1:
            E(f"s_cmp_lg_u32 s{sKH}, 0")
            E("s_cbranch_scc1 K3_SKIPLAST")
        frag_reads(0, 0)
        frag_reads(1, 1)
        for t in range(2):
            E(f"s_waitcnt lgkmcnt({3 if t == 0 else 0})")
            E(f"v_mfma_f32_32x32x16_bf16 v[{acc}:{acc+15}], v[{vBF+4*t}:{vBF+4*t+3}], v[{vAF+4*t}:{vAF+4*t+3}], v[{acc}:{acc+15}]")
        if st + PD < NST:
            issue_stage(st + PD)
        if st == NST - 1:
            E.label("K3_SKIPLAST")
    E("s_nop 15")
    E("s_barrier")
    E(f"v_lshlrev_b32 v2, 4, v{vLANE}")
    E(f"s_lshl_b32 s{sT0}, s{sWQ}, 13")
    E(f"v_add_u32 v2, s{sT0}, v2")
    E(f"s_cmp_eq_u32 s{sKH}, 0")
    E("s_cbranch_scc1 K3_RD")
    for i in range(8):
        E(f"ds_write_b128 v2, v[{vACC1+4*i}:{vACC1+4*i+3}] offset:{1024*i}")
    E("s_waitcnt lgkmcnt(0)")
    E("s_barrier")
    E("s_branch K3_END")
    E.label("K3_RD")
    E("s_barrier")
    for i in range(8):
        E(f"ds_read_b128 v[{vT+16+4*i}:{vT+16+4*i+3}], v2 offset:{1024*i}")
    E("s_waitcnt lgkmcnt(0)")
    for i in range(0, 32, 2):
        E(f"v_pk_add_f32 v[{vACC1+i}:{vACC1+i+1}], v[{vACC1+i}:{vACC1+i+1}], v[{vT+16+i}:{vT+16+i+1}]")
    E.stamp()
    E(f"v_sub_f32 v{vT}, 1.0, v{vG}")
    E(f"v_cvt_pk_bf16_f32 v{vT}, v{vT}, v{vT}")
    E(f"v_lshlrev_b32 v{vT}, 16, v{vT}")
    def rnd_pair(r):
        E(f"v_cvt_pk_bf16_f32 v{vT+1}, v{r}, v{r+1}")
        E(f"v_lshlrev_b32 v{r}, 16, v{vT+1}")
        E(f"v_and_b32 v{r+1}, 0xffff0000, v{vT+1}")
    for i in range(0, 16, 2):
        rnd_pair(vACC1 + i); rnd_pair(vACC2 + i)
        E(f"v_mul_f32 v{vACC1+i}, v{vG}, v{vACC1+i}")
        E(f"v_mul_f32 v{vACC1+i+1}, v{vG}, v{vACC1+i+1}")
        E(f"v_mul_f32 v{vACC2+i}, v{vT}, v{vACC2+i}")
        E(f"v_mul_f32 v{vACC2+i+1}, v{vT}, v{vACC2+i+1}")
        rnd_pair(vACC1 + i); rnd_pair(vACC2 + i)
        E(f"v_add_f32 v{vACC1+i}, v{vACC1+i}, v{vACC2+i}")
        E(f"v_add_f32 v{vACC1+i+1}, v{vACC1+i+1}, v{vACC2+i+1}")
        E(f"v_cvt_pk_bf16_f32 v{vT+4+i//2}, v{vACC1+i}, v{vACC1+i+1}")
    E(f"v_and_b32 v2, 31, v{vLANE}")
    E(f"v_lshrrev_b32 v3, 5, v{vLANE}")
    E(f"v_lshlrev_b32 v2, 10, v2")
    E(f"v_lshl_add_u32 v2, v3, 3, v2")
    E(f"s_lshl_b32 s{sT0}, s{sROW}, 10")
    E(f"s_lshl_b32 s{sT1}, s{sNT}, 7")
    E(f"s_add_u32 s{sT0}, s{sT0}, s{sT1}")
    E(f"s_lshr_b32 s{sT1}, s{sWQ}, 1")
    E(f"s_lshl_b32 s{sT1}, s{sT1}, 6")
    E(f"s_add_u32 s{sT0}, s{sT0}, s{sT1}")
    for q in range(4):
        E(f"buffer_store_dwordx2 v[{vT+4+2*q}:{vT+5+2*q}], v2, s[{S_OUT}:{S_OUT+3}], s{sT0} offen offset:{16*q}")
    E.stamp()
    E.dump_stamps(S_WS, sW, 2)
    E.label("K3_END")
    E("s_endpgm")
    return name, 128

def main():
    hdr = open(f"cdna_kernels/{NAME}.s.ref").read().split("\n")
    head = [l for l in hdr if l.startswith(";") and "@launch" not in l]
    E = Asm()
    k1, v1 = gen_k1(E)
    k2, v2 = gen_k2(E)
    k3, v3 = gen_k3(E)
    out = "\n".join(head) + "\n"
    out += f"; @launch kernel={k1} grid=(256,1,1) block=(512,1,1) lds=163840\n"
    out += f"; @launch kernel={k2} grid=(256,1,1) block=(512,1,1) lds=131072\n"
    out += f"; @launch kernel={k3} grid=(256,1,1) block=(512,1,1) lds={9*16384}\n"
    out += '.amdgcn_target "amdgcn-amd-amdhsa--gfx950"\n.text\n'
    out += E.text()
    out += '.section .rodata,"a"\n'
    out += kernel_desc(k1, v1) + kernel_desc(k2, v2) + kernel_desc(k3, v3)
    open(OUT, "w").write(out)
    print("wrote", OUT, len(out))

if __name__ == "__main__":
    main()
```

```python
import sys, math

NAME = "gated_mix__softmax_full_mha__dense_activation_mish__prompt"
OUT = f"cdna_kernels/{NAME}.s"
import os as _os
if int(_os.environ.get("DIAG","0")): OUT = "diag.s"

WS_Q   = 0
WS_K   = 2 << 20
WS_V   = 4 << 20
WS_O   = 6 << 20
WS_ACT = 8 << 20
WS_G   = 14 << 20
WS_B   = 15 << 20
WS_SIZE = 18 << 20

LOG2E = 1.4426950408889634
QSCALE = 0.25 * LOG2E

def f32bits(x):
    import struct
    return struct.unpack("<I", struct.pack("<f", x))[0]

import os
DIAG = int(os.environ.get("DIAG", "0"))
WS_DBG = 17 << 20
class Asm:
    def __init__(self):
        self.lines = []
        self.nstamp = 0
    def stamp(self):
        if not DIAG: return
        r = 70 + 2 * self.nstamp
        assert r < 100
        self(f"s_memtime s[{r}:{r+1}]")
        self("s_waitcnt lgkmcnt(0)")
        self.nstamp += 1
    def dump_stamps(self, srd, swave, kidx):
        if not DIAG: return
        self(f"s_lshl_b32 s68, s2, 4")
        self(f"s_add_u32 s68, s68, s{swave}")
        self(f"s_lshl_b32 s68, s68, 6")
        self(f"s_add_u32 s68, s68, {WS_DBG + kidx * 0x40000}")
        self(f"v_mov_b32 v2, 0")
        for i in range(self.nstamp):
            self(f"v_mov_b32 v3, s{70+2*i}")
            self(f"buffer_store_dword v3, v2, s[{srd}:{srd+3}], s68 offen offset:{4*i}")
            self("s_nop 1")
        self.nstamp = 0
    def __call__(self, s):
        self.lines.append("    " + s)
    def label(self, s):
        self.lines.append(s + ":")
    def raw(self, s):
        self.lines.append(s)
    def comment(self, s):
        self.lines.append("    ; " + s)
    def text(self):
        return "\n".join(self.lines) + "\n"

class VM:
    def __init__(self, E):
        self.E = E; self.ops = []
    def issue(self, tag):
        self.ops.append(tag)
    def wait(self, tag):
        idx = max(i for i, t in enumerate(self.ops) if t == tag)
        n = len(self.ops) - 1 - idx
        assert n <= 63
        self.E(f"s_waitcnt vmcnt({n})")
    def snap(self):
        return list(self.ops)
    def restore(self, s):
        self.ops = list(s)

def vr(a, n=1):
    return f"v{a}" if n == 1 else f"v[{a}:{a+n-1}]"
def sr(a, n=1):
    return f"s{a}" if n == 1 else f"s[{a}:{a+n-1}]"

def kernel_start(E, name):
    E.raw(f".globl {name}")
    E.raw(".p2align 8")
    E.raw(f".type {name},@function")
    E.label(name)

def kernel_desc(name, vgpr, sgpr=102):
    acc = (vgpr + 3) // 4 * 4
    return f""".p2align 6
.amdhsa_kernel {name}
  .amdhsa_next_free_vgpr {vgpr}
  .amdhsa_next_free_sgpr {sgpr}
  .amdhsa_accum_offset {acc}
  .amdhsa_group_segment_fixed_size 0
  .amdhsa_kernarg_size 88
  .amdhsa_user_sgpr_count 2
  .amdhsa_user_sgpr_kernarg_segment_ptr 1
  .amdhsa_system_sgpr_workgroup_id_x 1
.end_amdhsa_kernel
"""

def make_srd(E, d, base, size):
    E(f"s_mov_b32 s{d}, s{base}")
    E(f"s_and_b32 s{d+1}, s{base+1}, 0xffff")
    E(f"s_mov_b32 s{d+2}, {size}")
    E(f"s_mov_b32 s{d+3}, 0x00020000")

def gen_k1(E):
    name = "k1_proj_kernel"
    kernel_start(E, name)
    vm = VM(E)
    SLOT = 40960; XB = 16384
    NST = 8
    S_X, S_W, S_WS, S_B1, S_GW = 20, 24, 28, 32, 36
    sW, sMT, sNT, sRS, sN0, sT0, sT1, sT2 = 40, 41, 42, 43, 44, 45, 46, 47
    sXM0, sWM0, sWSTEP, sCOL, sISF = 48, 49, 50, 51, 52
    vLANE = 1
    vXD = 8
    vWD = 10
    vXA = 13
    vWA = 17
    vG = 20
    vBIAS = 21
    vGX = 24
    vXF = 48
    vWF = 56
    vACC = 80
    E("s_cmp_ge_u32 s2, 256")
    E("s_cbranch_scc1 K1_END")
    E("s_load_dwordx4 s[4:7], s[0:1], 0")
    E("s_load_dwordx4 s[8:11], s[0:1], 32")
    E("s_load_dwordx2 s[12:13], s[0:1], 56")
    E("s_load_dwordx2 s[14:15], s[0:1], 80")
    E(f"v_and_b32 v{vLANE}, 63, v0")
    E("v_lshrrev_b32 v2, 6, v0")
    E("s_nop 0")
    E(f"v_readfirstlane_b32 s{sW}, v2")
    E(f"s_and_b32 s{sT0}, s2, 7")
    E(f"s_lshr_b32 s{sT1}, s2, 3")
    E(f"s_and_b32 s{sMT}, s{sT0}, 1")
    E(f"s_lshl_b32 s{sMT}, s{sMT}, 3")
    E(f"s_and_b32 s{sT2}, s{sT1}, 7")
    E(f"s_add_u32 s{sMT}, s{sMT}, s{sT2}")
    E(f"s_lshr_b32 s{sNT}, s{sT0}, 1")
    E(f"s_lshl_b32 s{sNT}, s{sNT}, 2")
    E(f"s_lshr_b32 s{sT2}, s{sT1}, 3")
    E(f"s_add_u32 s{sNT}, s{sNT}, s{sT2}")
    for t in range(2):
        E(f"s_lshl_b32 s{sT0}, s{sW}, 4")
        E(f"s_add_u32 s{sT0}, s{sT0}, {8*t}")
        E(f"v_lshrrev_b32 v2, 3, v{vLANE}")
        E(f"v_add_u32 v2, s{sT0}, v2")
        E(f"v_lshrrev_b32 v3, 1, v2")
        E(f"v_and_b32 v3, 7, v3")
        E(f"v_and_b32 v4, 7, v{vLANE}")
        E(f"v_xor_b32 v3, v3, v4")
        E(f"s_lshl_b32 s{sT0}, s{sMT}, 7")
        E(f"v_add_u32 v2, s{sT0}, v2")
        E(f"v_lshlrev_b32 v2, 10, v2")
        E(f"v_lshl_add_u32 v{vXD+t}, v3, 4, v2")
    E(f"s_cmp_ge_u32 s{sNT}, 8")
    E(f"s_cselect_b32 s{sISF}, 1, 0")
    E(f"s_mov_b32 s{sT1}, 3072")
    E(f"s_cselect_b32 s{sRS}, 2752, s{sT1}")
    E(f"s_and_b32 s{sT0}, s{sNT}, 7")
    E(f"s_mul_i32 s{sN0}, s{sT0}, 192")
    E(f"s_lshl_b32 s{sWSTEP}, s{sRS}, 6")
    for t in range(3):
        E(f"s_mul_i32 s{sT0}, s{sW}, 192")
        E(f"s_add_u32 s{sT0}, s{sT0}, {64*t}")
        E(f"v_add_u32 v2, s{sT0}, v{vLANE}")
        E(f"v_mul_u32_u24 v3, 2731, v2")
        E(f"v_lshrrev_b32 v3, 16, v3")
        E(f"v_mul_u32_u24 v4, 24, v3")
        E(f"v_sub_u32 v4, v2, v4")
        E(f"v_lshlrev_b32 v5, 1, v3")
        E(f"v_and_b32 v5, 4, v5")
        E(f"v_xor_b32 v4, v4, v5")
        E(f"v_mul_lo_u32 v3, v3, s{sRS}")
        E(f"v_lshl_add_u32 v3, v4, 4, v3")
        E(f"s_lshl_b32 s{sT0}, s{sN0}, 1")
        E(f"v_add_u32 v{vWD+t}, s{sT0}, v3")
    E(f"s_lshl_b32 s{sXM0}, s{sW}, 11")
    E(f"s_mul_i32 s{sWM0}, s{sW}, 3072")
    E(f"s_add_u32 s{sWM0}, s{sWM0}, {XB}")
    E(f"s_lshr_b32 s{sT0}, s{sW}, 2")
    E(f"s_mul_i32 s{sT0}, s{sT0}, 96")
    E(f"s_add_u32 s{sCOL}, s{sN0}, s{sT0}")
    E("s_waitcnt lgkmcnt(0)")
    E.stamp()
    make_srd(E, S_X, 4, 2048 * 1024)
    E(f"s_cmp_lg_u32 s{sISF}, 0")
    E(f"s_cselect_b32 s{S_W}, s8, s6")
    E(f"s_cselect_b32 s{sT0}, s9, s7")
    E(f"s_and_b32 s{S_W+1}, s{sT0}, 0xffff")
    E(f"s_lshl_b32 s{S_W+2}, s{sRS}, 9")
    E(f"s_mov_b32 s{S_W+3}, 0x00020000")

    def dma(st, j):
        slot = st % 4
        if j < 2:
            E(f"s_mov_b32 s{sT0}, {st*128}")
            E(f"s_add_u32 m0, s{sXM0}, {slot*SLOT + j*1024}")
            E("s_nop 0")
            E(f"buffer_load_dwordx4 v{vXD+j}, s[{S_X}:{S_X+3}], s{sT0} offen lds")
        else:
            t = j - 2
            E(f"s_mul_i32 s{sT0}, s{sWSTEP}, {st}")
            E(f"s_add_u32 m0, s{sWM0}, {slot*SLOT + t*1024}")
            E("s_nop 0")
            E(f"buffer_load_dwordx4 v{vWD+t}, s[{S_W}:{S_W+3}], s{sT0} offen lds")
        vm.issue(("st", st))
    for st in range(3):
        for j in range(5):
            dma(st, j)
    make_srd(E, S_WS, 14, WS_SIZE)
    make_srd(E, S_B1, 10, 1376 * 2)
    make_srd(E, S_GW, 12, 1024)
    E(f"s_lshl_b32 s{sT0}, s2, 3")
    E(f"s_add_u32 s{sT0}, s{sT0}, s{sW}")
    E(f"s_lshl_b32 s{sT0}, s{sT0}, 10")
    E(f"v_lshlrev_b32 v2, 4, v{vLANE}")
    E(f"buffer_load_dwordx4 v[{vGX}:{vGX+3}], v2, s[{S_X}:{S_X+3}], s{sT0} offen"); vm.issue("misc")
    E(f"buffer_load_dwordx4 v[{vGX+4}:{vGX+7}], v2, s[{S_GW}:{S_GW+3}], 0 offen"); vm.issue("misc")
    E(f"v_lshlrev_b32 v2, 1, v{vLANE}")
    E(f"v_cmp_gt_u32 vcc, 32, v{vLANE}")
    E(f"v_mov_b32 v3, 0x7fff0000")
    E(f"s_lshl_b32 s{sT0}, s{sCOL}, 1")
    E(f"v_cndmask_b32 v2, v3, v2, vcc")
    for b in range(3):
        E(f"buffer_load_ushort v{vBIAS+b}, v2, s[{S_B1}:{S_B1+3}], s{sT0} offen offset:{64*b}"); vm.issue("misc")
    E.stamp()
    E(f"s_and_b32 s{sT0}, s{sW}, 3")
    E(f"s_lshl_b32 s{sT0}, s{sT0}, 5")
    E(f"v_and_b32 v2, 31, v{vLANE}")
    E(f"v_add_u32 v2, s{sT0}, v2")
    E(f"v_lshrrev_b32 v3, 1, v2")
    E(f"v_and_b32 v3, 7, v3")
    E(f"v_lshrrev_b32 v4, 5, v{vLANE}")
    E(f"v_lshlrev_b32 v2, 7, v2")
    for t in range(4):
        E(f"v_add_u32 v5, {2*t}, v4")
        E(f"v_xor_b32 v5, v5, v3")
        E(f"v_lshl_add_u32 v{vXA+t}, v5, 4, v2")
    E(f"v_lshrrev_b32 v2, 5, v{vLANE}")
    E(f"v_lshlrev_b32 v2, 3, v2")
    E(f"v_bfe_u32 v3, v{vLANE}, 2, 2")
    E(f"v_add_u32 v2, v2, v3")
    E(f"v_mul_u32_u24 v2, 384, v2")
    E(f"v_and_b32 v4, 1, v{vLANE}")
    E(f"v_lshl_add_u32 v2, v4, 3, v2")
    E(f"v_add_u32 v2, {XB}, v2")
    E(f"v_bfe_u32 v4, v{vLANE}, 4, 1")
    E(f"v_lshlrev_b32 v4, 1, v4")
    E(f"v_bfe_u32 v5, v{vLANE}, 1, 1")
    E(f"v_add_u32 v4, v4, v5")
    E(f"v_lshlrev_b32 v3, 1, v3")
    E(f"v_and_b32 v3, 4, v3")
    E(f"s_lshr_b32 s{sT0}, s{sW}, 2")
    E(f"s_mul_i32 s{sT0}, s{sT0}, 12")
    for b in range(3):
        E(f"v_add_u32 v5, s{sT0}, v4")
        E(f"v_add_u32 v5, {4*b}, v5")
        E(f"v_xor_b32 v5, v5, v3")
        E(f"v_lshl_add_u32 v{vWA+b}, v5, 4, v2")
    for i in range(48):
        E(f"v_mov_b32 v{vACC+i}, 0")
    E.stamp()
    E(f"s_cmp_lg_u32 s{sISF}, 0")
    E("s_cbranch_scc1 K1_TTT")
    E(f"s_cmp_ge_u32 s{sCOL}, 1024")
    E("s_cbranch_scc1 K1_NNN")
    E(f"s_cmp_eq_u32 s{sCOL}, 960")
    E("s_cbranch_scc1 K1_TTN")
    E("s_branch K1_TTT")

    X1 = os.environ.get("X1", "")
    def frag_reads(t, buf):
        E(f"ds_read_b128 v[{vXF+4*buf}:{vXF+4*buf+3}], v{vXA+t}")
        for b in range(3):
            for e in range(2):
                if X1 == "fewlds" and b > 0:
                    E(f"ds_read_b64_tr_b16 v[{vWF + 12 * buf + 4 * b + 2 * e}:{vWF + 12 * buf + 4 * b + 2 * e+1}], v{vWA+b} offset:0") if False else None
                    continue
                off = (16 * t + 4 * e) * 384
                d = vWF + 12 * buf + 4 * b + 2 * e
                E(f"ds_read_b64_tr_b16 v[{d}:{d+1}], v{vWA+b} offset:{off}")

    snap = vm.snap()
    def bump(st):
        delta = SLOT if (st % 4) != 0 else -3 * SLOT
        for r in list(range(vXA, vXA + 4)) + list(range(vWA, vWA + 3)):
            if delta > 0:
                E(f"v_add_u32 v{r}, {delta}, v{r}")
            else:
                E(f"v_subrev_u32 v{r}, {-delta}, v{r}")
    def main_loop(pat):
        E.nstamp = 3
        vm.restore(snap)
        vm.wait(("st", 0))
        E("s_barrier")
        E.stamp()
        frag_reads(0, 0)
        pend = []
        for st in range(NST):
            for t in range(4):
                buf = t & 1
                last = (st == NST - 1 and t == 3)
                if t == 3 and not last:
                    bump(st + 1)
                if not last:
                    frag_reads((t + 1) & 3, buf ^ 1)
                    E("s_waitcnt lgkmcnt(7)")
                else:
                    E("s_waitcnt lgkmcnt(0)")
                for b in range(3):
                    xf = f"v[{vXF+4*buf}:{vXF+4*buf+3}]"
                    wf = f"v[{vWF+12*buf+4*b}:{vWF+12*buf+4*b+3}]"
                    acc = f"v[{vACC+16*b}:{vACC+16*b+15}]"
                    if pat[b] == 'T':
                        E(f"v_mfma_f32_32x32x16_bf16 {acc}, {wf}, {xf}, {acc}")
                    else:
                        E(f"v_mfma_f32_32x32x16_bf16 {acc}, {xf}, {wf}, {acc}")
                if t == 1 and st + 1 < NST:
                    assert not pend
                    vm.wait(("st", st + 1))
                    E("s_barrier")
                    E.stamp()
                    if st + 3 < NST:
                        pend = [(st + 3, j) for j in range(5)]
                n = {2: 1, 3: 1, 0: 2, 1: 1}[t]
                if not (t == 1 and False):
                    for _ in range(n):
                        if pend and not (t == 1):
                            dma(*pend.pop(0))
                if t == 0:
                    while pend:
                        dma(*pend.pop(0))
    for pat in ("TTT", "TTN", "NNN"):
        E.label(f"K1_{pat}")
        main_loop(pat)
        E("s_branch K1_EPI")

    E.label("K1_EPI")
    vR, vH, vT = 2, 3, 4
    E(f"v_and_b32 v{vR}, 31, v{vLANE}")
    E(f"v_lshrrev_b32 v{vH}, 5, v{vLANE}")
    sROW = sT1
    E(f"s_and_b32 s{sT0}, s{sW}, 3")
    E(f"s_lshl_b32 s{sT0}, s{sT0}, 5")
    E(f"s_lshl_b32 s{sROW}, s{sMT}, 7")
    E(f"s_add_u32 s{sROW}, s{sROW}, s{sT0}")
    E(f"s_cmp_lg_u32 s{sISF}, 0")
    E("s_cbranch_scc1 K1_EPI_FFN")
    E("s_nop 15")
    E.stamp()
    P = vXF
    for b in range(3):
        acc = vACC + 16 * b
        E(f"s_add_u32 s{sT0}, s{sCOL}, {32*b}")
        E(f"s_lshr_b32 s{sT2}, s{sT0}, 9")
        E(f"s_and_b32 s{sT0}, s{sT0}, 511")
        E(f"s_lshr_b32 s{sT0}, s{sT0}, 4")
        E(f"s_cmp_eq_u32 s{sT2}, 1")
        E(f"s_cbranch_scc1 K1_EK{b}")
        E(f"s_cmp_eq_u32 s{sT2}, 2")
        E(f"s_cbranch_scc1 K1_EV{b}")
        for i in range(16):
            E(f"v_mul_f32 v{acc+i}, {hex(f32bits(QSCALE))}, v{acc+i}")
        for i in range(8):
            E(f"v_cvt_pk_bf16_f32 v{P+i}, v{acc+2*i}, v{acc+2*i+1}")
        E(f"v_add_u32 v{vT}, s{sROW}, v{vR}")
        E(f"v_lshlrev_b32 v{vT}, 5, v{vT}")
        E(f"v_lshl_add_u32 v{vT}, v{vH}, 4, v{vT}")
        E(f"s_lshl_b32 s{sT0}, s{sT0}, 16")
        E(f"s_add_u32 s{sT0}, s{sT0}, {WS_Q}")
        E(f"buffer_store_dwordx4 v[{P}:{P+3}], v{vT}, s[{S_WS}:{S_WS+3}], s{sT0} offen")
        E(f"s_add_u32 s{sT0}, s{sT0}, 65536")
        E(f"buffer_store_dwordx4 v[{P+4}:{P+7}], v{vT}, s[{S_WS}:{S_WS+3}], s{sT0} offen")
        E(f"s_branch K1_EN{b}")
        E.label(f"K1_EK{b}")
        for i in range(8):
            E(f"v_cvt_pk_bf16_f32 v{P+i}, v{acc+2*i}, v{acc+2*i+1}")
        E(f"v_lshlrev_b32 v{vT}, 4, v{vR}")
        E(f"v_lshl_add_u32 v{vT}, v{vH}, 9, v{vT}")
        E(f"s_lshl_b32 s{sT0}, s{sT0}, 16")
        E(f"s_lshl_b32 s{sT2}, s{sROW}, 5")
        E(f"s_add_u32 s{sT0}, s{sT0}, s{sT2}")
        E(f"s_add_u32 s{sT0}, s{sT0}, {WS_K}")
        E(f"buffer_store_dwordx4 v[{P}:{P+3}], v{vT}, s[{S_WS}:{S_WS+3}], s{sT0} offen")
        E(f"s_add_u32 s{sT0}, s{sT0}, 65536")
        E(f"buffer_store_dwordx4 v[{P+4}:{P+7}], v{vT}, s[{S_WS}:{S_WS+3}], s{sT0} offen")
        E(f"s_branch K1_EN{b}")
        E.label(f"K1_EV{b}")
        for i in range(8):
            E(f"v_cvt_pk_bf16_f32 v{P+i}, v{acc+2*i}, v{acc+2*i+1}")
        E(f"v_and_b32 v{vT}, 15, v{vR}")
        E(f"v_lshlrev_b32 v{vT}, 4, v{vT}")
        E(f"v_lshl_add_u32 v{vT}, v{vH}, 8, v{vT}")
        E(f"v_lshrrev_b32 v{vT+1}, 4, v{vR}")
        E(f"v_lshl_add_u32 v{vT}, v{vT+1}, 16, v{vT}")
        E(f"s_lshl_b32 s{sT0}, s{sT0}, 16")
        E(f"s_lshl_b32 s{sT2}, s{sROW}, 5")
        E(f"s_add_u32 s{sT0}, s{sT0}, s{sT2}")
        E(f"s_add_u32 s{sT0}, s{sT0}, {WS_V}")
        E(f"buffer_store_dwordx4 v[{P}:{P+3}], v{vT}, s[{S_WS}:{S_WS+3}], s{sT0} offen")
        E(f"buffer_store_dwordx4 v[{P+4}:{P+7}], v{vT}, s[{S_WS}:{S_WS+3}], s{sT0} offen offset:512")
        E.label(f"K1_EN{b}")
        E("s_nop 1")
    E("s_branch K1_GATE")

    E.label("K1_EPI_FFN")
    B = vXF
    X = vXF + 16
    E(f"v_cmp_gt_u32 vcc, 32, v{vLANE}")
    E(f"v_mov_b32 v{B}, 0x3f80")
    for i in range(1, 4):
        E(f"v_mov_b32 v{B+i}, 0")
    E(f"v_cndmask_b32 v{B}, 0, v{B}, vcc")
    for i in range(1, 4):
        E(f"v_mov_b32 v{B+4+i}, 0")
    for b in range(3):
        acc = f"v[{vACC+16*b}:{vACC+16*b+15}]"
        E(f"v_mov_b32 v{B+4}, v{vBIAS+b}")
        E("s_nop 1")
        E(f"v_mfma_f32_32x32x16_bf16 {acc}, v[{B+4}:{B+7}], v[{B}:{B+3}], {acc}")
    E(f"v_add_u32 v{vT}, s{sROW}, v{vR}")
    E(f"v_mul_u32_u24 v{vT}, 2752, v{vT}")
    E(f"v_lshl_add_u32 v{vT}, v{vH}, 4, v{vT}")
    E(f"s_mov_b32 s60, {hex(f32bits(LOG2E))}")
    E(f"s_mov_b32 s61, s60")
    E(f"s_mov_b32 s62, 2.0")
    E(f"s_mov_b32 s63, 2.0")
    E("s_nop 15")
    E.nstamp = 11
    E.stamp()
    for b in range(3):
        acc = vACC + 16 * b
        E(f"s_add_u32 s{sT0}, s{sCOL}, {32*b}")
        E(f"s_cmp_ge_u32 s{sT0}, 1376")
        E(f"s_cbranch_scc1 K1_GATE")
        for i in range(0, 16, 2):
            E(f"v_pk_mul_f32 v[{X+i}:{X+i+1}], v[{acc+i}:{acc+i+1}], s[60:61]")
        for i in range(16):
            E(f"v_min_f32 v{X+i}, 0x42200000, v{X+i}")
        for i in range(16):
            E(f"v_exp_f32 v{X+i}, v{X+i}")
        for i in range(0, 16, 2):
            E(f"v_pk_add_f32 v[{B+i}:{B+i+1}], v[{X+i}:{X+i+1}], s[62:63]")
        for i in range(0, 16, 2):
            E(f"v_pk_mul_f32 v[{X+i}:{X+i+1}], v[{X+i}:{X+i+1}], v[{B+i}:{B+i+1}]")
        for i in range(0, 16, 2):
            E(f"v_pk_add_f32 v[{B+i}:{B+i+1}], v[{X+i}:{X+i+1}], s[62:63]")
        for i in range(16):
            E(f"v_rcp_f32 v{B+i}, v{B+i}")
        for i in range(0, 16, 2):
            E(f"v_pk_mul_f32 v[{X+i}:{X+i+1}], v[{X+i}:{X+i+1}], v[{acc+i}:{acc+i+1}]")
        for i in range(0, 16, 2):
            E(f"v_pk_mul_f32 v[{X+i}:{X+i+1}], v[{X+i}:{X+i+1}], v[{B+i}:{B+i+1}]")
        for i in range(8):
            E(f"v_cvt_pk_bf16_f32 v{B+i}, v{X+2*i}, v{X+2*i+1}")
        E(f"s_lshl_b32 s{sT0}, s{sT0}, 1")
        E(f"s_add_u32 s{sT0}, s{sT0}, {WS_ACT}")
        E(f"buffer_store_dwordx4 v[{B}:{B+3}], v{vT}, s[{S_WS}:{S_WS+3}], s{sT0} offen")
        E(f"buffer_store_dwordx4 v[{B+4}:{B+7}], v{vT}, s[{S_WS}:{S_WS+3}], s{sT0} offen offset:32")
        E("s_nop 1")
    E.label("K1_GATE")
    a = vGX; w = vGX + 4; t0 = vGX + 8
    for d in range(4):
        E(f"v_lshlrev_b32 v{t0}, 16, v{a+d}")
        E(f"v_lshlrev_b32 v{t0+1}, 16, v{w+d}")
        E(f"v_and_b32 v{t0+2}, 0xffff0000, v{a+d}")
        E(f"v_and_b32 v{t0+3}, 0xffff0000, v{w+d}")
        E(f"v_mul_f32 v{t0}, v{t0}, v{t0+1}")
        E(f"v_mul_f32 v{t0+2}, v{t0+2}, v{t0+3}")
        E(f"v_cvt_pk_bf16_f32 v{t0}, v{t0}, v{t0+2}")
        E(f"v_lshlrev_b32 v{t0+1}, 16, v{t0}")
        E(f"v_and_b32 v{t0+2}, 0xffff0000, v{t0}")
        if d == 0:
            E(f"v_add_f32 v{vG}, v{t0+1}, v{t0+2}")
        else:
            E(f"v_add_f32 v{vG}, v{vG}, v{t0+1}")
            E(f"v_add_f32 v{vG}, v{vG}, v{t0+2}")
    for m in (1, 2, 4, 8, 16, 32):
        E(f"v_xor_b32 v{t0}, {m}, v{vLANE}")
        E(f"v_lshlrev_b32 v{t0}, 2, v{t0}")
        E(f"ds_bpermute_b32 v{t0+1}, v{t0}, v{vG}")
        E("s_waitcnt lgkmcnt(0)")
        E(f"v_add_f32 v{vG}, v{vG}, v{t0+1}")
    E(f"v_cvt_pk_bf16_f32 v{vG}, v{vG}, v{vG}")
    E(f"v_lshlrev_b32 v{vG}, 16, v{vG}")
    E(f"v_mul_f32 v{vG}, {hex(f32bits(-LOG2E))}, v{vG}")
    E(f"v_exp_f32 v{vG}, v{vG}")
    E("s_nop 0")
    E(f"v_add_f32 v{vG}, 1.0, v{vG}")
    E(f"v_rcp_f32 v{vG}, v{vG}")
    E("s_nop 0")
    E(f"v_cvt_pk_bf16_f32 v{vG}, v{vG}, v{vG}")
    E(f"v_lshlrev_b32 v{vG}, 16, v{vG}")
    E.nstamp = 12
    E.stamp()
    E.dump_stamps(S_WS, sW, 0)
    E(f"s_lshl_b32 s{sT0}, s2, 3")
    E(f"s_add_u32 s{sT0}, s{sT0}, s{sW}")
    E(f"s_lshl_b32 s{sT0}, s{sT0}, 2")
    E(f"s_add_u32 s{sT0}, s{sT0}, {WS_G}")
    E(f"v_mov_b32 v2, 0")
    E(f"v_cmp_eq_u32 vcc, 0, v{vLANE}")
    E("s_and_saveexec_b64 s[64:65], vcc")
    E(f"buffer_store_dword v{vG}, v2, s[{S_WS}:{S_WS+3}], s{sT0} offen")
    E("s_mov_b64 exec, s[64:65]")
    E.label("K1_END")
    E("s_endpgm")
    return name, 128

def gen_k2(E):
    name = "k2_attn_kernel"
    kernel_start(E, name)
    S_WS = 20
    sW, sH, sQB, sT0, sT1, sPASS, sIT = 40, 41, 42, 43, 44, 45, 46
    vLANE = 1
    vKA, vVA = 4, 5
    vDMA = 6
    vQ = 8
    vKF = 12
    vVF = 20
    vP = 36
    vS = 48
    vC = 80
    vO = 96
    vT = 112
    E("s_cmp_ge_u32 s2, 256")
    E("s_cbranch_scc1 K2_END")
    E("s_load_dwordx2 s[14:15], s[0:1], 80")
    E(f"v_and_b32 v{vLANE}, 63, v0")
    E("v_lshrrev_b32 v2, 6, v0")
    E("s_nop 0")
    E(f"v_readfirstlane_b32 s{sW}, v2")
    E(f"s_and_b32 s{sQB}, s2, 7")
    E(f"s_lshr_b32 s{sH}, s2, 3")
    E("s_load_dwordx2 s[4:5], s[0:1], 16")
    E("s_load_dwordx2 s[6:7], s[0:1], 48")
    E("s_waitcnt lgkmcnt(0)")
    E.stamp()
    make_srd(E, S_WS, 14, WS_SIZE)
    make_srd(E, 24, 4, 512 * 1024)
    make_srd(E, 28, 6, 1376 * 1024)
    E(f"v_and_b32 v2, 31, v{vLANE}")
    E(f"v_lshrrev_b32 v3, 5, v{vLANE}")
    E(f"v_lshlrev_b32 v2, 5, v2")
    E(f"v_lshl_add_u32 v2, v3, 4, v2")
    E(f"s_lshl_b32 s{sT0}, s{sH}, 11")
    E(f"s_lshl_b32 s{sT1}, s{sQB}, 8")
    E(f"s_add_u32 s{sT0}, s{sT0}, s{sT1}")
    E(f"s_lshl_b32 s{sT1}, s{sW}, 5")
    E(f"s_add_u32 s{sT0}, s{sT0}, s{sT1}")
    E(f"s_lshl_b32 s{sT0}, s{sT0}, 5")
    E(f"s_add_u32 s{sT0}, s{sT0}, {WS_Q}")
    E(f"buffer_load_dwordx4 v[{vQ}:{vQ+3}], v2, s[{S_WS}:{S_WS+3}], s{sT0} offen")
    E(f"v_lshlrev_b32 v{vDMA}, 4, v{vLANE}")
    E(f"s_lshl_b32 s{sT1}, s{sW}, 10")
    E(f"s_lshl_b32 s{sT0}, s{sH}, 16")
    E(f"s_add_u32 s{sT0}, s{sT0}, s{sT1}")
    E(f"s_mov_b32 s48, s{sT1}")
    E(f"s_add_u32 s49, s{sT0}, {WS_K}")
    def dma_chunk():
        E(f"s_mov_b32 m0, s48")
        E(f"s_add_u32 s50, s49, {WS_V - WS_K}")
        E(f"buffer_load_dwordx4 v{vDMA}, s[{S_WS}:{S_WS+3}], s49 offen lds")
        E(f"s_add_u32 m0, s48, 65536")
        E(f"s_add_u32 s48, s48, 8192")
        E(f"buffer_load_dwordx4 v{vDMA}, s[{S_WS}:{S_WS+3}], s50 offen lds")
        E(f"s_add_u32 s49, s49, 8192")
    dma_chunk()
    E(f"v_and_b32 v2, 31, v{vLANE}")
    E(f"v_cmp_eq_u32 vcc, 16, v2")
    E(f"v_mov_b32 v3, 0x3f803f80")
    E("s_nop 0")
    E(f"v_cndmask_b32 v3, 0, v3, vcc")
    for i in range(16):
        E(f"v_mov_b32 v{vVF+i}, v3")
    E("s_mov_b32 s52, 0x0000ffff")
    E("s_mov_b32 s53, 0x0000ffff")
    E(f"s_mov_b32 s{sPASS}, 0")
    E.stamp()
    E("s_waitcnt vmcnt(0)")
    E("s_barrier")
    E.stamp()
    E(f"v_lshlrev_b32 v{vKA}, 4, v{vLANE}")
    E(f"ds_read_b128 v[{vKF}:{vKF+3}], v{vKA}")
    E("s_waitcnt lgkmcnt(0)")
    E(f"v_mfma_f32_32x32x16_bf16 v[{vS}:{vS+15}], v[{vKF}:{vKF+3}], v[{vQ}:{vQ+3}], 0")
    E("s_nop 15")
    def rowmax16(src, dst):
        E(f"v_max3_f32 v{dst}, v{src}, v{src+1}, v{src+2}")
        for i in range(3, 15, 2):
            E(f"v_max3_f32 v{dst}, v{dst}, v{src+i}, v{src+i+1}")
        E(f"v_max_f32 v{dst}, v{dst}, v{src+15}")
    def cross_half_max(reg):
        E(f"v_mov_b32 v{vT+1}, v{reg}")
        E(f"v_mov_b32 v{vT+2}, v{reg}")
        E("s_nop 1")
        E(f"v_permlane32_swap_b32 v{vT+1}, v{vT+2}")
        E("s_nop 1")
        E(f"v_max_f32 v{reg}, v{vT+1}, v{vT+2}")
    rowmax16(vS, vT)
    cross_half_max(vT)
    E.label("K2_RUN")
    for i in range(16):
        E(f"v_sub_f32 v{vC+i}, 0, v{vT}")
    for i in range(16):
        E(f"v_mov_b32 v{vO+i}, 0")
    E(f"v_lshlrev_b32 v{vKA}, 4, v{vLANE}")
    E(f"v_and_b32 v2, 31, v{vLANE}")
    E(f"v_lshrrev_b32 v3, 5, v{vLANE}")
    E(f"v_lshlrev_b32 v2, 4, v2")
    E(f"v_lshl_add_u32 v2, v3, 8, v2")
    E(f"v_add_u32 v{vVA}, 65536, v2")
    X_NOLDS = int(os.environ.get("X_NOLDS", "0"))
    X_NOEXEC = int(os.environ.get("X_NOEXEC", "0"))
    def rdK(buf, tile_off):
        if X_NOLDS: return
        E(f"ds_read_b128 v[{vKF+4*buf}:{vKF+4*buf+3}], v{vKA} offset:{tile_off*1024}")
    def rdV(buf, tile_off):
        if X_NOLDS: return
        if not X_NOEXEC: E("s_mov_b64 exec, s[52:53]")
        E(f"ds_read_b128 v[{vVF+8*buf}:{vVF+8*buf+3}], v{vVA} offset:{tile_off*1024}")
        E(f"ds_read_b128 v[{vVF+8*buf+4}:{vVF+8*buf+7}], v{vVA} offset:{tile_off*1024+512}")
        if not X_NOEXEC: E("s_mov_b64 exec, -1")
    def qk(sbuf, kbuf):
        E(f"v_mfma_f32_32x32x16_bf16 v[{vS+16*sbuf}:{vS+16*sbuf+15}], v[{vKF+4*kbuf}:{vKF+4*kbuf+3}], v[{vQ}:{vQ+3}], v[{vC}:{vC+15}]")
    rdK(0, 0); rdK(1, 1); rdV(0, 0)
    E("s_waitcnt lgkmcnt(3)")
    qk(0, 0)
    E(f"s_mov_b32 s{sIT}, 0")
    E.label("K2_LOOP")
    E(f"s_cmp_lg_u32 s{sPASS}, 0")
    E("s_cbranch_scc1 K2_NODMA")
    E(f"s_cmp_ge_u32 s{sIT}, 7")
    E("s_cbranch_scc1 K2_NODMA")
    dma_chunk()
    E.label("K2_NODMA")
    PF = int(os.environ.get("PF", "1"))
    if PF:
        E(f"s_cmp_lg_u32 s{sIT}, 16")
        E("s_cbranch_scc1 K2_NOPF")
        E(f"s_lshl_b32 s58, s{sH}, 3")
        E(f"s_add_u32 s58, s58, s{sW}")
        E(f"s_lshl_b32 s59, s58, 11")
        for j in range(2):
            E(f"buffer_load_dwordx4 v[124:127], v{vDMA}, s[24:27], s59 offen offset:{1024*j}")
        E(f"s_mul_i32 s59, s58, 5504")
        for j in range(3):
            E(f"buffer_load_dwordx4 v[124:127], v{vDMA}, s[28:31], s59 offen offset:{1024*j}")
        E(f"s_add_u32 s59, s59, 3072")
        for j in range(3):
            E(f"buffer_load_dwordx4 v[124:127], v{vDMA}, s[28:31], s59 offen offset:{1024*j}")
        E(f"s_mul_i32 s59, s58, 2752")
        E(f"s_mul_i32 s58, s{sQB}, {256*2752}")
        E(f"s_add_u32 s59, s59, s58")
        E(f"s_add_u32 s59, s59, {WS_ACT}")
        for j in range(3):
            E(f"buffer_load_dwordx4 v[124:127], v{vDMA}, s[{S_WS}:{S_WS+3}], s59 offen offset:{1024*j}")
        E.label("K2_NOPF")
    for half in range(2):
        X = half; Y = half ^ 1
        E("s_waitcnt lgkmcnt(2)")
        qk(Y, Y)
        rdK(X, half + 2)
        s = vS + 16 * X
        for i in range(8):
            E(f"v_exp_f32 v{s+i}, v{s+i}")
        for i in range(4):
            E(f"v_cvt_pk_bf16_f32 v{vP+i}, v{s+2*i}, v{s+2*i+1}")
        E("s_waitcnt lgkmcnt(1)")
        for i in range(8, 10):
            E(f"v_exp_f32 v{s+i}, v{s+i}")
        E(f"v_mfma_f32_32x32x16_bf16 v[{vO}:{vO+15}], v[{vVF+8*X}:{vVF+8*X+3}], v[{vP}:{vP+3}], v[{vO}:{vO+15}]")
        for i in range(10, 16):
            E(f"v_exp_f32 v{s+i}, v{s+i}")
        for i in range(4, 8):
            E(f"v_cvt_pk_bf16_f32 v{vP+i}, v{s+2*i}, v{s+2*i+1}")
        rdV(Y, half + 1)
        E(f"v_mfma_f32_32x32x16_bf16 v[{vO}:{vO+15}], v[{vVF+8*X+4}:{vVF+8*X+7}], v[{vP+4}:{vP+7}], v[{vO}:{vO+15}]")
    E(f"v_add_u32 v{vKA}, 2048, v{vKA}")
    E(f"v_add_u32 v{vVA}, 2048, v{vVA}")
    E(f"s_add_u32 s{sIT}, s{sIT}, 1")
    E(f"s_cmp_lg_u32 s{sPASS}, 0")
    E("s_cbranch_scc1 K2_NOBAR")
    E(f"s_cmp_eq_u32 s{sIT}, 3")
    E("s_cbranch_scc0 K2_B2")
    E.stamp()
    E("s_waitcnt vmcnt(4)")
    E("s_barrier")
    E.stamp()
    E("s_branch K2_NOBAR")
    E.label("K2_B2")
    E(f"s_cmp_eq_u32 s{sIT}, 7")
    E("s_cbranch_scc0 K2_B3")
    E("s_waitcnt vmcnt(8)")
    E("s_barrier")
    E("s_branch K2_NOBAR")
    E.label("K2_B3")
    E(f"s_cmp_eq_u32 s{sIT}, 15")
    E("s_cbranch_scc0 K2_NOBAR")
    E("s_waitcnt vmcnt(0)")
    E("s_barrier")
    E.label("K2_NOBAR")
    E(f"s_cmp_lt_u32 s{sIT}, 32")
    E("s_cbranch_scc1 K2_LOOP")
    E("s_waitcnt lgkmcnt(0)")
    E("s_nop 15")
    E.stamp()
    E(f"v_mov_b32 v{vT+1}, v{vO+8}")
    E(f"v_mov_b32 v{vT+2}, v{vO+8}")
    E("s_nop 1")
    E(f"v_permlane32_swap_b32 v{vT+1}, v{vT+2}")
    E(f"s_cmp_lg_u32 s{sPASS}, 0")
    E("s_cbranch_scc1 K2_FIN")
    E(f"v_max3_f32 v{vT+3}, |v{vO}|, |v{vO+1}|, |v{vO+2}|")
    E(f"v_max3_f32 v{vT+3}, v{vT+3}, |v{vO+3}|, |v{vO+4}|")
    E(f"v_max3_f32 v{vT+3}, v{vT+3}, |v{vO+5}|, |v{vO+6}|")
    E(f"v_max_f32 v{vT+3}, v{vT+3}, |v{vO+7}|")
    E(f"s_mov_b32 s54, 0x5d800000")
    E(f"s_mov_b32 s55, 0x7f000000")
    E(f"v_cmp_nlt_f32 vcc, v{vT+1}, s54")
    E(f"v_cmp_nlt_f32 s[56:57], v{vT+3}, s55")
    E("s_nop 1")
    E("s_or_b64 vcc, vcc, s[56:57]")
    E("s_cbranch_vccz K2_FIN")
    E(f"v_lshlrev_b32 v{vKA}, 4, v{vLANE}")
    E(f"v_mov_b32 v{vT}, 0xff800000")
    E(f"s_mov_b32 s{sIT}, 0")
    E.label("K2_MAXLOOP")
    E(f"ds_read_b128 v[{vKF}:{vKF+3}], v{vKA}")
    E("s_waitcnt lgkmcnt(0)")
    E(f"v_mfma_f32_32x32x16_bf16 v[{vS}:{vS+15}], v[{vKF}:{vKF+3}], v[{vQ}:{vQ+3}], 0")
    E("s_nop 15")
    for i in range(0, 16, 2):
        E(f"v_max3_f32 v{vT}, v{vT}, v{vS+i}, v{vS+i+1}")
    E(f"v_add_u32 v{vKA}, 1024, v{vKA}")
    E(f"s_add_u32 s{sIT}, s{sIT}, 1")
    E(f"s_cmp_lt_u32 s{sIT}, 64")
    E("s_cbranch_scc1 K2_MAXLOOP")
    cross_half_max(vT)
    E(f"s_mov_b32 s{sPASS}, 1")
    E("s_branch K2_RUN")
    E.label("K2_FIN")
    E(f"v_rcp_f32 v{vT+1}, v{vT+1}")
    E("s_nop 0")
    for i in range(8):
        E(f"v_mul_f32 v{vO+i}, v{vO+i}, v{vT+1}")
    for i in range(4):
        E(f"v_cvt_pk_bf16_f32 v{vP+i}, v{vO+2*i}, v{vO+2*i+1}")
    E(f"v_and_b32 v2, 31, v{vLANE}")
    E(f"v_lshrrev_b32 v3, 5, v{vLANE}")
    E(f"v_lshlrev_b32 v2, 10, v2")
    E(f"v_lshl_add_u32 v2, v3, 4, v2")
    E(f"s_lshl_b32 s{sT0}, s{sQB}, 8")
    E(f"s_lshl_b32 s{sT1}, s{sW}, 5")
    E(f"s_add_u32 s{sT0}, s{sT0}, s{sT1}")
    E(f"s_lshl_b32 s{sT0}, s{sT0}, 10")
    E(f"s_lshl_b32 s{sT1}, s{sH}, 5")
    E(f"s_add_u32 s{sT0}, s{sT0}, s{sT1}")
    E(f"s_add_u32 s{sT0}, s{sT0}, {WS_O}")
    E(f"buffer_store_dwordx4 v[{vP}:{vP+3}], v2, s[{S_WS}:{S_WS+3}], s{sT0} offen")
    E.stamp()
    E.dump_stamps(S_WS, sW, 1)
    E.label("K2_END")
    E("s_endpgm")
    return name, 128

def gen_k3(E):
    name = "k3_out_kernel"
    kernel_start(E, name)
    vm = VM(E)
    NS = 9; SLOT = 16384; AB = 8192
    S_WS, S_WO, S_W2, S_OUT = 20, 24, 28, 32
    sW, sMT, sNT, sT0, sT1, sAM0, sBM0, sROW, sKH, sWQ = 40, 41, 42, 43, 44, 45, 46, 47, 48, 49
    vLANE = 1
    vAD1 = 8
    vAD2 = 9
    vBD = 10
    vAA = 12
    vBA = 14
    vG = 15
    vAF = 24
    vBF = 32
    vACC1 = 48
    vACC2 = 64
    vT = 80
    E("s_cmp_ge_u32 s2, 256")
    E("s_cbranch_scc1 K3_END")
    E("s_load_dwordx2 s[4:5], s[0:1], 16")
    E("s_load_dwordx2 s[6:7], s[0:1], 48")
    E("s_load_dwordx2 s[8:9], s[0:1], 64")
    E("s_load_dwordx2 s[14:15], s[0:1], 80")
    E(f"v_and_b32 v{vLANE}, 63, v0")
    E("v_lshrrev_b32 v2, 6, v0")
    E("s_nop 0")
    E(f"v_readfirstlane_b32 s{sW}, v2")
    E(f"s_and_b32 s{sT0}, s2, 7")
    E(f"s_lshr_b32 s{sT1}, s2, 3")
    E(f"s_lshl_b32 s{sMT}, s{sT0}, 2")
    E(f"s_and_b32 s{sT0}, s{sT1}, 3")
    E(f"s_add_u32 s{sMT}, s{sMT}, s{sT0}")
    E(f"s_lshr_b32 s{sNT}, s{sT1}, 2")
    E(f"s_lshr_b32 s{sKH}, s{sW}, 2")
    E(f"s_and_b32 s{sWQ}, s{sW}, 3")
    E(f"s_lshl_b32 s{sT0}, s{sW}, 3")
    E(f"v_lshrrev_b32 v2, 3, v{vLANE}")
    E(f"v_add_u32 v2, s{sT0}, v2")
    E(f"v_lshrrev_b32 v3, 1, v2")
    E(f"v_and_b32 v3, 7, v3")
    E(f"v_and_b32 v4, 7, v{vLANE}")
    E(f"v_xor_b32 v3, v3, v4")
    E(f"s_lshl_b32 s{sT0}, s{sMT}, 6")
    E(f"v_add_u32 v5, s{sT0}, v2")
    E(f"v_lshlrev_b32 v6, 10, v5")
    E(f"v_lshl_add_u32 v6, v3, 4, v6")
    E(f"v_add_u32 v{vAD1}, {WS_O}, v6")
    E(f"v_mul_u32_u24 v6, 2752, v5")
    E(f"v_lshl_add_u32 v6, v3, 4, v6")
    E(f"v_add_u32 v{vAD2}, {WS_ACT}, v6")
    E(f"v_lshlrev_b32 v3, 1, v2")
    E(f"v_and_b32 v3, 4, v3")
    E(f"v_xor_b32 v3, v3, v4")
    E(f"v_lshlrev_b32 v2, 10, v2")
    E(f"v_lshl_add_u32 v2, v3, 4, v2")
    E(f"s_lshl_b32 s{sT0}, s{sNT}, 7")
    E(f"v_add_u32 v{vBD}, s{sT0}, v2")
    E(f"s_lshl_b32 s{sAM0}, s{sW}, 10")
    E(f"s_add_u32 s{sBM0}, s{sAM0}, {AB}")
    E("s_waitcnt lgkmcnt(0)")
    E.stamp()
    make_srd(E, S_WS, 14, WS_SIZE)
    make_srd(E, S_WO, 4, 512 * 1024)
    make_srd(E, S_W2, 6, 1376 * 1024)
    make_srd(E, S_OUT, 8, 2048 * 1024)
    NST = 30
    def issue_stage(st):
        slot = st % NS
        if st < 8:
            ad, bs, ka = vAD1, S_WO, st
        else:
            ad, bs, ka = vAD2, S_W2, st - 8
        E(f"s_mov_b32 s{sT0}, {ka*128}")
        E(f"s_add_u32 m0, s{sAM0}, {slot*SLOT}")
        E("s_nop 0")
        E(f"buffer_load_dwordx4 v{ad}, s[{S_WS}:{S_WS+3}], s{sT0} offen lds"); vm.issue(st)
        E(f"s_mov_b32 s{sT0}, {ka*65536}")
        E(f"s_add_u32 m0, s{sBM0}, {slot*SLOT}")
        E("s_nop 0")
        E(f"buffer_load_dwordx4 v{vBD}, s[{bs}:{bs+3}], s{sT0} offen lds"); vm.issue(st)
    PD = NS - 1
    for st in range(PD):
        issue_stage(st)
    E(f"s_and_b32 s{sT0}, s{sWQ}, 1")
    E(f"s_lshl_b32 s{sT0}, s{sT0}, 5")
    E(f"s_lshl_b32 s{sT1}, s{sMT}, 6")
    E(f"s_add_u32 s{sROW}, s{sT0}, s{sT1}")
    E(f"s_lshl_b32 s{sT0}, s{sROW}, 2")
    E(f"s_add_u32 s{sT0}, s{sT0}, {WS_G}")
    E(f"v_and_b32 v2, 31, v{vLANE}")
    E(f"v_lshlrev_b32 v2, 2, v2")
    E(f"buffer_load_dword v{vG}, v2, s[{S_WS}:{S_WS+3}], s{sT0} offen"); vm.issue("g")
    E.stamp()
    E(f"s_and_b32 s{sT0}, s{sWQ}, 1")
    E(f"s_lshl_b32 s{sT0}, s{sT0}, 5")
    E(f"v_and_b32 v2, 31, v{vLANE}")
    E(f"v_add_u32 v2, s{sT0}, v2")
    E(f"v_lshrrev_b32 v3, 1, v2")
    E(f"v_and_b32 v3, 7, v3")
    E(f"v_lshrrev_b32 v4, 5, v{vLANE}")
    E(f"v_lshlrev_b32 v2, 7, v2")
    E(f"s_lshl_b32 s{sT0}, s{sKH}, 2")
    E(f"v_add_u32 v4, s{sT0}, v4")
    for t in range(2):
        E(f"v_add_u32 v5, {2*t}, v4")
        E(f"v_xor_b32 v5, v5, v3")
        E(f"v_lshl_add_u32 v{vAA+t}, v5, 4, v2")
    E(f"v_lshrrev_b32 v2, 5, v{vLANE}")
    E(f"v_lshlrev_b32 v2, 2, v2")
    E(f"v_bfe_u32 v3, v{vLANE}, 2, 2")
    E(f"v_add_u32 v2, v2, v3")
    E(f"s_lshl_b32 s{sT0}, s{sKH}, 5")
    E(f"v_add_u32 v2, s{sT0}, v2")
    E(f"v_lshlrev_b32 v2, 7, v2")
    E(f"v_and_b32 v4, 1, v{vLANE}")
    E(f"v_lshl_add_u32 v2, v4, 3, v2")
    E(f"v_add_u32 v2, {AB}, v2")
    E(f"v_bfe_u32 v4, v{vLANE}, 4, 1")
    E(f"v_lshlrev_b32 v4, 1, v4")
    E(f"v_bfe_u32 v5, v{vLANE}, 1, 1")
    E(f"v_add_u32 v4, v4, v5")
    E(f"s_lshr_b32 s{sT0}, s{sWQ}, 1")
    E(f"s_lshl_b32 s{sT0}, s{sT0}, 2")
    E(f"v_add_u32 v4, s{sT0}, v4")
    E(f"v_lshlrev_b32 v3, 1, v3")
    E(f"v_and_b32 v3, 4, v3")
    E(f"v_xor_b32 v4, v4, v3")
    E(f"v_lshl_add_u32 v{vBA}, v4, 4, v2")
    for i in range(32):
        E(f"v_mov_b32 v{vACC1+i}, 0")
    def frag_reads(t, buf):
        E(f"ds_read_b128 v[{vAF+4*buf}:{vAF+4*buf+3}], v{vAA+t}")
        for e in range(2):
            off = (16 * t + 8 * e) * 128
            d = vBF + 4 * buf + 2 * e
            E(f"ds_read_b64_tr_b16 v[{d}:{d+1}], v{vBA} offset:{off}")
    def bump(st):
        delta = SLOT if (st % NS) != 0 else -(NS - 1) * SLOT
        for r in [vAA, vAA + 1, vBA]:
            if delta > 0:
                E(f"v_add_u32 v{r}, {delta}, v{r}")
            else:
                E(f"v_subrev_u32 v{r}, {-delta}, v{r}")
    vm.wait(0)
    E("s_barrier")
    E.stamp()
    frag_reads(0, 0)
    for st in range(NST):
        acc = vACC1 if st < 8 else vACC2
        lastst = (st == NST - 1)
        if lastst:
            E(f"s_cmp_lg_u32 s{sKH}, 0")
            E("s_cbranch_scc1 K3_SKIPLAST")
        frag_reads(1, 1)
        E("s_waitcnt lgkmcnt(3)")
        E(f"v_mfma_f32_32x32x16_bf16 v[{acc}:{acc+15}], v[{vBF}:{vBF+3}], v[{vAF}:{vAF+3}], v[{acc}:{acc+15}]")
        if not lastst:
            vm.wait(st + 1)
            E("s_barrier")
            if st + 1 in (1, 2, 4, 8, 12, 16, 20, 24, 29): E.stamp()
            if st + PD < NST:
                issue_stage(st + PD)
            bump(st + 1)
            frag_reads(0, 0)
            E("s_waitcnt lgkmcnt(3)")
        else:
            E("s_waitcnt lgkmcnt(0)")
        E(f"v_mfma_f32_32x32x16_bf16 v[{acc}:{acc+15}], v[{vBF+4}:{vBF+7}], v[{vAF+4}:{vAF+7}], v[{acc}:{acc+15}]")
        if lastst:
            E.label("K3_SKIPLAST")
            E("s_waitcnt lgkmcnt(0)")
    E("s_nop 15")
    E("s_barrier")
    E(f"v_lshlrev_b32 v2, 4, v{vLANE}")
    E(f"s_lshl_b32 s{sT0}, s{sWQ}, 13")
    E(f"v_add_u32 v2, s{sT0}, v2")
    E(f"s_cmp_eq_u32 s{sKH}, 0")
    E("s_cbranch_scc1 K3_RD")
    for i in range(8):
        E(f"ds_write_b128 v2, v[{vACC1+4*i}:{vACC1+4*i+3}] offset:{1024*i}")
    E("s_waitcnt lgkmcnt(0)")
    E("s_barrier")
    E("s_branch K3_END")
    E.label("K3_RD")
    E("s_barrier")
    for i in range(8):
        E(f"ds_read_b128 v[{vT+16+4*i}:{vT+16+4*i+3}], v2 offset:{1024*i}")
    E("s_waitcnt lgkmcnt(0)")
    for i in range(0, 32, 2):
        E(f"v_pk_add_f32 v[{vACC1+i}:{vACC1+i+1}], v[{vACC1+i}:{vACC1+i+1}], v[{vT+16+i}:{vT+16+i+1}]")
    E.stamp()
    E(f"v_sub_f32 v{vT}, 1.0, v{vG}")
    E(f"v_cvt_pk_bf16_f32 v{vT}, v{vT}, v{vT}")
    E(f"v_lshlrev_b32 v{vT}, 16, v{vT}")
    def rnd_pair(r):
        E(f"v_cvt_pk_bf16_f32 v{vT+1}, v{r}, v{r+1}")
        E(f"v_lshlrev_b32 v{r}, 16, v{vT+1}")
        E(f"v_and_b32 v{r+1}, 0xffff0000, v{vT+1}")
    for i in range(0, 16, 2):
        rnd_pair(vACC1 + i); rnd_pair(vACC2 + i)
        E(f"v_mul_f32 v{vACC1+i}, v{vG}, v{vACC1+i}")
        E(f"v_mul_f32 v{vACC1+i+1}, v{vG}, v{vACC1+i+1}")
        E(f"v_mul_f32 v{vACC2+i}, v{vT}, v{vACC2+i}")
        E(f"v_mul_f32 v{vACC2+i+1}, v{vT}, v{vACC2+i+1}")
        rnd_pair(vACC1 + i); rnd_pair(vACC2 + i)
        E(f"v_add_f32 v{vACC1+i}, v{vACC1+i}, v{vACC2+i}")
        E(f"v_add_f32 v{vACC1+i+1}, v{vACC1+i+1}, v{vACC2+i+1}")
        E(f"v_cvt_pk_bf16_f32 v{vT+4+i//2}, v{vACC1+i}, v{vACC1+i+1}")
    E(f"v_and_b32 v2, 31, v{vLANE}")
    E(f"v_lshrrev_b32 v3, 5, v{vLANE}")
    E(f"v_lshlrev_b32 v2, 10, v2")
    E(f"v_lshl_add_u32 v2, v3, 3, v2")
    E(f"s_lshl_b32 s{sT0}, s{sROW}, 10")
    E(f"s_lshl_b32 s{sT1}, s{sNT}, 7")
    E(f"s_add_u32 s{sT0}, s{sT0}, s{sT1}")
    E(f"s_lshr_b32 s{sT1}, s{sWQ}, 1")
    E(f"s_lshl_b32 s{sT1}, s{sT1}, 6")
    E(f"s_add_u32 s{sT0}, s{sT0}, s{sT1}")
    for q in range(4):
        E(f"buffer_store_dwordx2 v[{vT+4+2*q}:{vT+5+2*q}], v2, s[{S_OUT}:{S_OUT+3}], s{sT0} offen offset:{16*q}")
    E.stamp()
    E.dump_stamps(S_WS, sW, 2)
    E.label("K3_END")
    E("s_endpgm")
    return name, 128

def main():
    hdr = open(f"cdna_kernels/{NAME}.s.ref").read().split("\n")
    head = [l for l in hdr if l.startswith(";") and "@launch" not in l]
    E = Asm()
    k1, v1 = gen_k1(E)
    k2, v2 = gen_k2(E)
    k3, v3 = gen_k3(E)
    out = "\n".join(head) + "\n"
    out += f"; @launch kernel={k1} grid=(256,1,1) block=(512,1,1) lds=163840\n"
    out += f"; @launch kernel={k2} grid=(256,1,1) block=(512,1,1) lds=131072\n"
    out += f"; @launch kernel={k3} grid=(256,1,1) block=(512,1,1) lds={9*16384}\n"
    out += '.amdgcn_target "amdgcn-amd-amdhsa--gfx950"\n.text\n'
    out += E.text()
    out += '.section .rodata,"a"\n'
    out += kernel_desc(k1, v1) + kernel_desc(k2, v2) + kernel_desc(k3, v3)
    open(OUT, "w").write(out)
    print("wrote", OUT, len(out))

if __name__ == "__main__":
    main()
```

```python
import sys, math

NAME = "gated_mix__softmax_full_mha__dense_activation_mish__prompt"
OUT = f"cdna_kernels/{NAME}.s"
import os as _os
if int(_os.environ.get("DIAG","0")): OUT = "diag.s"

WS_Q   = 0
WS_K   = 2 << 20
WS_V   = 4 << 20
WS_O   = 6 << 20
WS_ACT = 8 << 20
WS_G   = 14 << 20
WS_B   = 15 << 20
WS_SIZE = 18 << 20

LOG2E = 1.4426950408889634
QSCALE = 0.25 * LOG2E

def f32bits(x):
    import struct
    return struct.unpack("<I", struct.pack("<f", x))[0]

import os
DIAG = int(os.environ.get("DIAG", "0"))
WS_DBG = 17 << 20
class Asm:
    def __init__(self):
        self.lines = []
        self.nstamp = 0
    def stamp(self):
        if not DIAG: return
        r = 70 + 2 * self.nstamp
        assert r < 100
        self(f"s_memtime s[{r}:{r+1}]")
        self("s_waitcnt lgkmcnt(0)")
        self.nstamp += 1
    def dump_stamps(self, srd, swave, kidx):
        if not DIAG: return
        self(f"s_lshl_b32 s68, s2, 4")
        self(f"s_add_u32 s68, s68, s{swave}")
        self(f"s_lshl_b32 s68, s68, 6")
        self(f"s_add_u32 s68, s68, {WS_DBG + kidx * 0x40000}")
        self(f"v_mov_b32 v2, 0")
        for i in range(self.nstamp):
            self(f"v_mov_b32 v3, s{70+2*i}")
            self(f"buffer_store_dword v3, v2, s[{srd}:{srd+3}], s68 offen offset:{4*i}")
            self("s_nop 1")
        self.nstamp = 0
    def __call__(self, s):
        self.lines.append("    " + s)
    def label(self, s):
        self.lines.append(s + ":")
    def raw(self, s):
        self.lines.append(s)
    def comment(self, s):
        self.lines.append("    ; " + s)
    def text(self):
        return "\n".join(self.lines) + "\n"

class VM:
    def __init__(self, E):
        self.E = E; self.ops = []
    def issue(self, tag):
        self.ops.append(tag)
    def wait(self, tag):
        idx = max(i for i, t in enumerate(self.ops) if t == tag)
        n = len(self.ops) - 1 - idx
        assert n <= 63
        self.E(f"s_waitcnt vmcnt({n})")
    def snap(self):
        return list(self.ops)
    def restore(self, s):
        self.ops = list(s)

def vr(a, n=1):
    return f"v{a}" if n == 1 else f"v[{a}:{a+n-1}]"
def sr(a, n=1):
    return f"s{a}" if n == 1 else f"s[{a}:{a+n-1}]"

def kernel_start(E, name):
    E.raw(f".globl {name}")
    E.raw(".p2align 8")
    E.raw(f".type {name},@function")
    E.label(name)

def kernel_desc(name, vgpr, sgpr=102):
    acc = (vgpr + 3) // 4 * 4
    return f""".p2align 6
.amdhsa_kernel {name}
  .amdhsa_next_free_vgpr {vgpr}
  .amdhsa_next_free_sgpr {sgpr}
  .amdhsa_accum_offset {acc}
  .amdhsa_group_segment_fixed_size 0
  .amdhsa_kernarg_size 88
  .amdhsa_user_sgpr_count 2
  .amdhsa_user_sgpr_kernarg_segment_ptr 1
  .amdhsa_system_sgpr_workgroup_id_x 1
.end_amdhsa_kernel
"""

def make_srd(E, d, base, size):
    E(f"s_mov_b32 s{d}, s{base}")
    E(f"s_and_b32 s{d+1}, s{base+1}, 0xffff")
    E(f"s_mov_b32 s{d+2}, {size}")
    E(f"s_mov_b32 s{d+3}, 0x00020000")

def gen_k1(E):
    name = "k1_proj_kernel"
    kernel_start(E, name)
    vm = VM(E)
    SLOT = 40960; XB = 16384
    NST = 8
    S_X, S_W, S_WS, S_B1, S_GW = 20, 24, 28, 32, 36
    sW, sMT, sNT, sRS, sN0, sT0, sT1, sT2 = 40, 41, 42, 43, 44, 45, 46, 47
    sXM0, sWM0, sWSTEP, sCOL, sISF = 48, 49, 50, 51, 52
    vLANE = 1
    vXD = 8
    vWD = 10
    vXA = 13
    vWA = 17
    vG = 20
    vBIAS = 21
    vGX = 24
    vXF = 48
    vWF = 56
    vACC = 80
    E("s_cmp_ge_u32 s2, 256")
    E("s_cbranch_scc1 K1_END")
    E("s_load_dwordx4 s[4:7], s[0:1], 0")
    E("s_load_dwordx4 s[8:11], s[0:1], 32")
    E("s_load_dwordx2 s[12:13], s[0:1], 56")
    E("s_load_dwordx2 s[14:15], s[0:1], 80")
    E(f"v_and_b32 v{vLANE}, 63, v0")
    E("v_lshrrev_b32 v2, 6, v0")
    E("s_nop 0")
    E(f"v_readfirstlane_b32 s{sW}, v2")
    E(f"s_and_b32 s{sT0}, s2, 7")
    E(f"s_lshr_b32 s{sT1}, s2, 3")
    E(f"s_and_b32 s{sMT}, s{sT0}, 1")
    E(f"s_lshl_b32 s{sMT}, s{sMT}, 3")
    E(f"s_and_b32 s{sT2}, s{sT1}, 7")
    E(f"s_add_u32 s{sMT}, s{sMT}, s{sT2}")
    E(f"s_lshr_b32 s{sNT}, s{sT0}, 1")
    E(f"s_lshl_b32 s{sNT}, s{sNT}, 2")
    E(f"s_lshr_b32 s{sT2}, s{sT1}, 3")
    E(f"s_add_u32 s{sNT}, s{sNT}, s{sT2}")
    for t in range(2):
        E(f"s_lshl_b32 s{sT0}, s{sW}, 4")
        E(f"s_add_u32 s{sT0}, s{sT0}, {8*t}")
        E(f"v_lshrrev_b32 v2, 3, v{vLANE}")
        E(f"v_add_u32 v2, s{sT0}, v2")
        E(f"v_lshrrev_b32 v3, 1, v2")
        E(f"v_and_b32 v3, 7, v3")
        E(f"v_and_b32 v4, 7, v{vLANE}")
        E(f"v_xor_b32 v3, v3, v4")
        E(f"s_lshl_b32 s{sT0}, s{sMT}, 7")
        E(f"v_add_u32 v2, s{sT0}, v2")
        E(f"v_lshlrev_b32 v2, 10, v2")
        E(f"v_lshl_add_u32 v{vXD+t}, v3, 4, v2")
    E(f"s_cmp_ge_u32 s{sNT}, 8")
    E(f"s_cselect_b32 s{sISF}, 1, 0")
    E(f"s_mov_b32 s{sT1}, 3072")
    E(f"s_cselect_b32 s{sRS}, 2752, s{sT1}")
    E(f"s_and_b32 s{sT0}, s{sNT}, 7")
    E(f"s_mul_i32 s{sN0}, s{sT0}, 192")
    E(f"s_lshl_b32 s{sWSTEP}, s{sRS}, 6")
    for t in range(3):
        E(f"s_mul_i32 s{sT0}, s{sW}, 192")
        E(f"s_add_u32 s{sT0}, s{sT0}, {64*t}")
        E(f"v_add_u32 v2, s{sT0}, v{vLANE}")
        E(f"v_mul_u32_u24 v3, 2731, v2")
        E(f"v_lshrrev_b32 v3, 16, v3")
        E(f"v_mul_u32_u24 v4, 24, v3")
        E(f"v_sub_u32 v4, v2, v4")
        E(f"v_lshlrev_b32 v5, 1, v3")
        E(f"v_and_b32 v5, 4, v5")
        E(f"v_xor_b32 v4, v4, v5")
        E(f"v_mul_lo_u32 v3, v3, s{sRS}")
        E(f"v_lshl_add_u32 v3, v4, 4, v3")
        E(f"s_lshl_b32 s{sT0}, s{sN0}, 1")
        E(f"v_add_u32 v{vWD+t}, s{sT0}, v3")
    E(f"s_lshl_b32 s{sXM0}, s{sW}, 11")
    E(f"s_mul_i32 s{sWM0}, s{sW}, 3072")
    E(f"s_add_u32 s{sWM0}, s{sWM0}, {XB}")
    E(f"s_lshr_b32 s{sT0}, s{sW}, 2")
    E(f"s_mul_i32 s{sT0}, s{sT0}, 96")
    E(f"s_add_u32 s{sCOL}, s{sN0}, s{sT0}")
    E("s_waitcnt lgkmcnt(0)")
    E.stamp()
    make_srd(E, S_X, 4, 2048 * 1024)
    E(f"s_cmp_lg_u32 s{sISF}, 0")
    E(f"s_cselect_b32 s{S_W}, s8, s6")
    E(f"s_cselect_b32 s{sT0}, s9, s7")
    E(f"s_and_b32 s{S_W+1}, s{sT0}, 0xffff")
    E(f"s_lshl_b32 s{S_W+2}, s{sRS}, 9")
    E(f"s_mov_b32 s{S_W+3}, 0x00020000")

    def dma(st, j):
        slot = st % 4
        if j < 2:
            E(f"s_mov_b32 s{sT0}, {st*128}")
            E(f"s_add_u32 m0, s{sXM0}, {slot*SLOT + j*1024}")
            E("s_nop 0")
            E(f"buffer_load_dwordx4 v{vXD+j}, s[{S_X}:{S_X+3}], s{sT0} offen lds")
        else:
            t = j - 2
            E(f"s_mul_i32 s{sT0}, s{sWSTEP}, {st}")
            E(f"s_add_u32 m0, s{sWM0}, {slot*SLOT + t*1024}")
            E("s_nop 0")
            E(f"buffer_load_dwordx4 v{vWD+t}, s[{S_W}:{S_W+3}], s{sT0} offen lds")
        vm.issue(("st", st))
    for st in range(3):
        for j in range(5):
            dma(st, j)
    make_srd(E, S_WS, 14, WS_SIZE)
    make_srd(E, S_B1, 10, 1376 * 2)
    make_srd(E, S_GW, 12, 1024)
    E(f"s_lshl_b32 s{sT0}, s2, 3")
    E(f"s_add_u32 s{sT0}, s{sT0}, s{sW}")
    E(f"s_lshl_b32 s{sT0}, s{sT0}, 10")
    E(f"v_lshlrev_b32 v2, 4, v{vLANE}")
    E(f"buffer_load_dwordx4 v[{vGX}:{vGX+3}], v2, s[{S_X}:{S_X+3}], s{sT0} offen"); vm.issue("misc")
    E(f"buffer_load_dwordx4 v[{vGX+4}:{vGX+7}], v2, s[{S_GW}:{S_GW+3}], 0 offen"); vm.issue("misc")
    E(f"v_lshlrev_b32 v2, 1, v{vLANE}")
    E(f"v_cmp_gt_u32 vcc, 32, v{vLANE}")
    E(f"v_mov_b32 v3, 0x7fff0000")
    E(f"s_lshl_b32 s{sT0}, s{sCOL}, 1")
    E(f"v_cndmask_b32 v2, v3, v2, vcc")
    for b in range(3):
        E(f"buffer_load_ushort v{vBIAS+b}, v2, s[{S_B1}:{S_B1+3}], s{sT0} offen offset:{64*b}"); vm.issue("misc")
    E.stamp()
    E(f"s_and_b32 s{sT0}, s{sW}, 3")
    E(f"s_lshl_b32 s{sT0}, s{sT0}, 5")
    E(f"v_and_b32 v2, 31, v{vLANE}")
    E(f"v_add_u32 v2, s{sT0}, v2")
    E(f"v_lshrrev_b32 v3, 1, v2")
    E(f"v_and_b32 v3, 7, v3")
    E(f"v_lshrrev_b32 v4, 5, v{vLANE}")
    E(f"v_lshlrev_b32 v2, 7, v2")
    for t in range(4):
        E(f"v_add_u32 v5, {2*t}, v4")
        E(f"v_xor_b32 v5, v5, v3")
        E(f"v_lshl_add_u32 v{vXA+t}, v5, 4, v2")
    E(f"v_lshrrev_b32 v2, 5, v{vLANE}")
    E(f"v_lshlrev_b32 v2, 3, v2")
    E(f"v_bfe_u32 v3, v{vLANE}, 2, 2")
    E(f"v_add_u32 v2, v2, v3")
    E(f"v_mul_u32_u24 v2, 384, v2")
    E(f"v_and_b32 v4, 1, v{vLANE}")
    E(f"v_lshl_add_u32 v2, v4, 3, v2")
    E(f"v_add_u32 v2, {XB}, v2")
    E(f"v_bfe_u32 v4, v{vLANE}, 4, 1")
    E(f"v_lshlrev_b32 v4, 1, v4")
    E(f"v_bfe_u32 v5, v{vLANE}, 1, 1")
    E(f"v_add_u32 v4, v4, v5")
    E(f"v_lshlrev_b32 v3, 1, v3")
    E(f"v_and_b32 v3, 4, v3")
    E(f"s_lshr_b32 s{sT0}, s{sW}, 2")
    E(f"s_mul_i32 s{sT0}, s{sT0}, 12")
    for b in range(3):
        E(f"v_add_u32 v5, s{sT0}, v4")
        E(f"v_add_u32 v5, {4*b}, v5")
        E(f"v_xor_b32 v5, v5, v3")
        E(f"v_lshl_add_u32 v{vWA+b}, v5, 4, v2")
    for i in range(48):
        E(f"v_mov_b32 v{vACC+i}, 0")
    E.stamp()
    E(f"s_cmp_lg_u32 s{sISF}, 0")
    E("s_cbranch_scc1 K1_TTT")
    E(f"s_cmp_ge_u32 s{sCOL}, 1024")
    E("s_cbranch_scc1 K1_NNN")
    E(f"s_cmp_eq_u32 s{sCOL}, 960")
    E("s_cbranch_scc1 K1_TTN")
    E("s_branch K1_TTT")

    X1 = os.environ.get("X1", "")
    def frag_reads(t, buf):
        E(f"ds_read_b128 v[{vXF+4*buf}:{vXF+4*buf+3}], v{vXA+t}")
        for b in range(3):
            for e in range(2):
                if X1 == "fewlds" and b > 0:
                    E(f"ds_read_b64_tr_b16 v[{vWF + 12 * buf + 4 * b + 2 * e}:{vWF + 12 * buf + 4 * b + 2 * e+1}], v{vWA+b} offset:0") if False else None
                    continue
                off = (16 * t + 4 * e) * 384
                d = vWF + 12 * buf + 4 * b + 2 * e
                E(f"ds_read_b64_tr_b16 v[{d}:{d+1}], v{vWA+b} offset:{off}")

    snap = vm.snap()
    def bump(st):
        delta = SLOT if (st % 4) != 0 else -3 * SLOT
        for r in list(range(vXA, vXA + 4)) + list(range(vWA, vWA + 3)):
            if delta > 0:
                E(f"v_add_u32 v{r}, {delta}, v{r}")
            else:
                E(f"v_subrev_u32 v{r}, {-delta}, v{r}")
    def main_loop(pat):
        E.nstamp = 3
        vm.restore(snap)
        vm.wait(("st", 0))
        E("s_barrier")
        E.stamp()
        frag_reads(0, 0)
        pend = []
        for st in range(NST):
            for t in range(4):
                buf = t & 1
                last = (st == NST - 1 and t == 3)
                if t == 3 and not last:
                    bump(st + 1)
                if not last:
                    frag_reads((t + 1) & 3, buf ^ 1)
                    E("s_waitcnt lgkmcnt(7)")
                else:
                    E("s_waitcnt lgkmcnt(0)")
                for b in range(3):
                    xf = f"v[{vXF+4*buf}:{vXF+4*buf+3}]"
                    wf = f"v[{vWF+12*buf+4*b}:{vWF+12*buf+4*b+3}]"
                    acc = f"v[{vACC+16*b}:{vACC+16*b+15}]"
                    if pat[b] == 'T':
                        E(f"v_mfma_f32_32x32x16_bf16 {acc}, {wf}, {xf}, {acc}")
                    else:
                        E(f"v_mfma_f32_32x32x16_bf16 {acc}, {xf}, {wf}, {acc}")
                if t == 1 and st + 1 < NST:
                    assert not pend
                    X2 = os.environ.get("X2", "")
                    if X2 != "nosync":
                        vm.wait(("st", st + 1))
                        E("s_barrier")
                    E.stamp()
                    if st + 3 < NST and X2 not in ("nosync", "nodma"):
                        pend = [(st + 3, j) for j in range(5)]
                    elif st + 3 < NST:
                        for j in range(5): vm.issue(("st", st + 3))
                n = {2: 1, 3: 1, 0: 2, 1: 1}[t]
                if not (t == 1 and False):
                    for _ in range(n):
                        if pend and not (t == 1):
                            dma(*pend.pop(0))
                if t == 0:
                    while pend:
                        dma(*pend.pop(0))
    for pat in ("TTT", "TTN", "NNN"):
        E.label(f"K1_{pat}")
        main_loop(pat)
        E("s_branch K1_EPI")

    E.label("K1_EPI")
    vR, vH, vT = 2, 3, 4
    E(f"v_and_b32 v{vR}, 31, v{vLANE}")
    E(f"v_lshrrev_b32 v{vH}, 5, v{vLANE}")
    sROW = sT1
    E(f"s_and_b32 s{sT0}, s{sW}, 3")
    E(f"s_lshl_b32 s{sT0}, s{sT0}, 5")
    E(f"s_lshl_b32 s{sROW}, s{sMT}, 7")
    E(f"s_add_u32 s{sROW}, s{sROW}, s{sT0}")
    E(f"s_cmp_lg_u32 s{sISF}, 0")
    E("s_cbranch_scc1 K1_EPI_FFN")
    E("s_nop 15")
    E.stamp()
    P = vXF
    for b in range(3):
        acc = vACC + 16 * b
        E(f"s_add_u32 s{sT0}, s{sCOL}, {32*b}")
        E(f"s_lshr_b32 s{sT2}, s{sT0}, 9")
        E(f"s_and_b32 s{sT0}, s{sT0}, 511")
        E(f"s_lshr_b32 s{sT0}, s{sT0}, 4")
        E(f"s_cmp_eq_u32 s{sT2}, 1")
        E(f"s_cbranch_scc1 K1_EK{b}")
        E(f"s_cmp_eq_u32 s{sT2}, 2")
        E(f"s_cbranch_scc1 K1_EV{b}")
        for i in range(16):
            E(f"v_mul_f32 v{acc+i}, {hex(f32bits(QSCALE))}, v{acc+i}")
        for i in range(8):
            E(f"v_cvt_pk_bf16_f32 v{P+i}, v{acc+2*i}, v{acc+2*i+1}")
        E(f"v_add_u32 v{vT}, s{sROW}, v{vR}")
        E(f"v_lshlrev_b32 v{vT}, 5, v{vT}")
        E(f"v_lshl_add_u32 v{vT}, v{vH}, 4, v{vT}")
        E(f"s_lshl_b32 s{sT0}, s{sT0}, 16")
        E(f"s_add_u32 s{sT0}, s{sT0}, {WS_Q}")
        E(f"buffer_store_dwordx4 v[{P}:{P+3}], v{vT}, s[{S_WS}:{S_WS+3}], s{sT0} offen")
        E(f"s_add_u32 s{sT0}, s{sT0}, 65536")
        E(f"buffer_store_dwordx4 v[{P+4}:{P+7}], v{vT}, s[{S_WS}:{S_WS+3}], s{sT0} offen")
        E(f"s_branch K1_EN{b}")
        E.label(f"K1_EK{b}")
        for i in range(8):
            E(f"v_cvt_pk_bf16_f32 v{P+i}, v{acc+2*i}, v{acc+2*i+1}")
        E(f"v_lshlrev_b32 v{vT}, 4, v{vR}")
        E(f"v_lshl_add_u32 v{vT}, v{vH}, 9, v{vT}")
        E(f"s_lshl_b32 s{sT0}, s{sT0}, 16")
        E(f"s_lshl_b32 s{sT2}, s{sROW}, 5")
        E(f"s_add_u32 s{sT0}, s{sT0}, s{sT2}")
        E(f"s_add_u32 s{sT0}, s{sT0}, {WS_K}")
        E(f"buffer_store_dwordx4 v[{P}:{P+3}], v{vT}, s[{S_WS}:{S_WS+3}], s{sT0} offen")
        E(f"s_add_u32 s{sT0}, s{sT0}, 65536")
        E(f"buffer_store_dwordx4 v[{P+4}:{P+7}], v{vT}, s[{S_WS}:{S_WS+3}], s{sT0} offen")
        E(f"s_branch K1_EN{b}")
        E.label(f"K1_EV{b}")
        for i in range(8):
            E(f"v_cvt_pk_bf16_f32 v{P+i}, v{acc+2*i}, v{acc+2*i+1}")
        E(f"v_and_b32 v{vT}, 15, v{vR}")
        E(f"v_lshlrev_b32 v{vT}, 4, v{vT}")
        E(f"v_lshl_add_u32 v{vT}, v{vH}, 8, v{vT}")
        E(f"v_lshrrev_b32 v{vT+1}, 4, v{vR}")
        E(f"v_lshl_add_u32 v{vT}, v{vT+1}, 16, v{vT}")
        E(f"s_lshl_b32 s{sT0}, s{sT0}, 16")
        E(f"s_lshl_b32 s{sT2}, s{sROW}, 5")
        E(f"s_add_u32 s{sT0}, s{sT0}, s{sT2}")
        E(f"s_add_u32 s{sT0}, s{sT0}, {WS_V}")
        E(f"buffer_store_dwordx4 v[{P}:{P+3}], v{vT}, s[{S_WS}:{S_WS+3}], s{sT0} offen")
        E(f"buffer_store_dwordx4 v[{P+4}:{P+7}], v{vT}, s[{S_WS}:{S_WS+3}], s{sT0} offen offset:512")
        E.label(f"K1_EN{b}")
        E("s_nop 1")
    E("s_branch K1_GATE")

    E.label("K1_EPI_FFN")
    B = vXF
    X = vXF + 16
    E(f"v_cmp_gt_u32 vcc, 32, v{vLANE}")
    E(f"v_mov_b32 v{B}, 0x3f80")
    for i in range(1, 4):
        E(f"v_mov_b32 v{B+i}, 0")
    E(f"v_cndmask_b32 v{B}, 0, v{B}, vcc")
    for i in range(1, 4):
        E(f"v_mov_b32 v{B+4+i}, 0")
    for b in range(3):
        acc = f"v[{vACC+16*b}:{vACC+16*b+15}]"
        E(f"v_mov_b32 v{B+4}, v{vBIAS+b}")
        E("s_nop 1")
        E(f"v_mfma_f32_32x32x16_bf16 {acc}, v[{B+4}:{B+7}], v[{B}:{B+3}], {acc}")
    E(f"v_add_u32 v{vT}, s{sROW}, v{vR}")
    E(f"v_mul_u32_u24 v{vT}, 2752, v{vT}")
    E(f"v_lshl_add_u32 v{vT}, v{vH}, 4, v{vT}")
    E(f"s_mov_b32 s60, {hex(f32bits(LOG2E))}")
    E(f"s_mov_b32 s61, s60")
    E(f"s_mov_b32 s62, 2.0")
    E(f"s_mov_b32 s63, 2.0")
    E("s_nop 15")
    E.nstamp = 11
    E.stamp()
    for b in range(3):
        acc = vACC + 16 * b
        E(f"s_add_u32 s{sT0}, s{sCOL}, {32*b}")
        E(f"s_cmp_ge_u32 s{sT0}, 1376")
        E(f"s_cbranch_scc1 K1_GATE")
        for i in range(0, 16, 2):
            E(f"v_pk_mul_f32 v[{X+i}:{X+i+1}], v[{acc+i}:{acc+i+1}], s[60:61]")
        for i in range(16):
            E(f"v_min_f32 v{X+i}, 0x42200000, v{X+i}")
        for i in range(16):
            E(f"v_exp_f32 v{X+i}, v{X+i}")
        for i in range(0, 16, 2):
            E(f"v_pk_add_f32 v[{B+i}:{B+i+1}], v[{X+i}:{X+i+1}], s[62:63]")
        for i in range(0, 16, 2):
            E(f"v_pk_mul_f32 v[{X+i}:{X+i+1}], v[{X+i}:{X+i+1}], v[{B+i}:{B+i+1}]")
        for i in range(0, 16, 2):
            E(f"v_pk_add_f32 v[{B+i}:{B+i+1}], v[{X+i}:{X+i+1}], s[62:63]")
        for i in range(16):
            E(f"v_rcp_f32 v{B+i}, v{B+i}")
        for i in range(0, 16, 2):
            E(f"v_pk_mul_f32 v[{X+i}:{X+i+1}], v[{X+i}:{X+i+1}], v[{acc+i}:{acc+i+1}]")
        for i in range(0, 16, 2):
            E(f"v_pk_mul_f32 v[{X+i}:{X+i+1}], v[{X+i}:{X+i+1}], v[{B+i}:{B+i+1}]")
        for i in range(8):
            E(f"v_cvt_pk_bf16_f32 v{B+i}, v{X+2*i}, v{X+2*i+1}")
        E(f"s_lshl_b32 s{sT0}, s{sT0}, 1")
        E(f"s_add_u32 s{sT0}, s{sT0}, {WS_ACT}")
        E(f"buffer_store_dwordx4 v[{B}:{B+3}], v{vT}, s[{S_WS}:{S_WS+3}], s{sT0} offen")
        E(f"buffer_store_dwordx4 v[{B+4}:{B+7}], v{vT}, s[{S_WS}:{S_WS+3}], s{sT0} offen offset:32")
        E("s_nop 1")
    E.label("K1_GATE")
    a = vGX; w = vGX + 4; t0 = vGX + 8
    for d in range(4):
        E(f"v_lshlrev_b32 v{t0}, 16, v{a+d}")
        E(f"v_lshlrev_b32 v{t0+1}, 16, v{w+d}")
        E(f"v_and_b32 v{t0+2}, 0xffff0000, v{a+d}")
        E(f"v_and_b32 v{t0+3}, 0xffff0000, v{w+d}")
        E(f"v_mul_f32 v{t0}, v{t0}, v{t0+1}")
        E(f"v_mul_f32 v{t0+2}, v{t0+2}, v{t0+3}")
        E(f"v_cvt_pk_bf16_f32 v{t0}, v{t0}, v{t0+2}")
        E(f"v_lshlrev_b32 v{t0+1}, 16, v{t0}")
        E(f"v_and_b32 v{t0+2}, 0xffff0000, v{t0}")
        if d == 0:
            E(f"v_add_f32 v{vG}, v{t0+1}, v{t0+2}")
        else:
            E(f"v_add_f32 v{vG}, v{vG}, v{t0+1}")
            E(f"v_add_f32 v{vG}, v{vG}, v{t0+2}")
    for m in (1, 2, 4, 8, 16, 32):
        E(f"v_xor_b32 v{t0}, {m}, v{vLANE}")
        E(f"v_lshlrev_b32 v{t0}, 2, v{t0}")
        E(f"ds_bpermute_b32 v{t0+1}, v{t0}, v{vG}")
        E("s_waitcnt lgkmcnt(0)")
        E(f"v_add_f32 v{vG}, v{vG}, v{t0+1}")
    E(f"v_cvt_pk_bf16_f32 v{vG}, v{vG}, v{vG}")
    E(f"v_lshlrev_b32 v{vG}, 16, v{vG}")
    E(f"v_mul_f32 v{vG}, {hex(f32bits(-LOG2E))}, v{vG}")
    E(f"v_exp_f32 v{vG}, v{vG}")
    E("s_nop 0")
    E(f"v_add_f32 v{vG}, 1.0, v{vG}")
    E(f"v_rcp_f32 v{vG}, v{vG}")
    E("s_nop 0")
    E(f"v_cvt_pk_bf16_f32 v{vG}, v{vG}, v{vG}")
    E(f"v_lshlrev_b32 v{vG}, 16, v{vG}")
    E.nstamp = 12
    E.stamp()
    E.dump_stamps(S_WS, sW, 0)
    E(f"s_lshl_b32 s{sT0}, s2, 3")
    E(f"s_add_u32 s{sT0}, s{sT0}, s{sW}")
    E(f"s_lshl_b32 s{sT0}, s{sT0}, 2")
    E(f"s_add_u32 s{sT0}, s{sT0}, {WS_G}")
    E(f"v_mov_b32 v2, 0")
    E(f"v_cmp_eq_u32 vcc, 0, v{vLANE}")
    E("s_and_saveexec_b64 s[64:65], vcc")
    E(f"buffer_store_dword v{vG}, v2, s[{S_WS}:{S_WS+3}], s{sT0} offen")
    E("s_mov_b64 exec, s[64:65]")
    E.label("K1_END")
    E("s_endpgm")
    return name, 128

def gen_k2(E):
    name = "k2_attn_kernel"
    kernel_start(E, name)
    S_WS = 20
    sW, sH, sQB, sT0, sT1, sPASS, sIT = 40, 41, 42, 43, 44, 45, 46
    vLANE = 1
    vKA, vVA = 4, 5
    vDMA = 6
    vQ = 8
    vKF = 12
    vVF = 20
    vP = 36
    vS = 48
    vC = 80
    vO = 96
    vT = 112
    E("s_cmp_ge_u32 s2, 256")
    E("s_cbranch_scc1 K2_END")
    E("s_load_dwordx2 s[14:15], s[0:1], 80")
    E(f"v_and_b32 v{vLANE}, 63, v0")
    E("v_lshrrev_b32 v2, 6, v0")
    E("s_nop 0")
    E(f"v_readfirstlane_b32 s{sW}, v2")
    E(f"s_and_b32 s{sQB}, s2, 7")
    E(f"s_lshr_b32 s{sH}, s2, 3")
    E("s_load_dwordx2 s[4:5], s[0:1], 16")
    E("s_load_dwordx2 s[6:7], s[0:1], 48")
    E("s_waitcnt lgkmcnt(0)")
    E.stamp()
    make_srd(E, S_WS, 14, WS_SIZE)
    make_srd(E, 24, 4, 512 * 1024)
    make_srd(E, 28, 6, 1376 * 1024)
    E(f"v_and_b32 v2, 31, v{vLANE}")
    E(f"v_lshrrev_b32 v3, 5, v{vLANE}")
    E(f"v_lshlrev_b32 v2, 5, v2")
    E(f"v_lshl_add_u32 v2, v3, 4, v2")
    E(f"s_lshl_b32 s{sT0}, s{sH}, 11")
    E(f"s_lshl_b32 s{sT1}, s{sQB}, 8")
    E(f"s_add_u32 s{sT0}, s{sT0}, s{sT1}")
    E(f"s_lshl_b32 s{sT1}, s{sW}, 5")
    E(f"s_add_u32 s{sT0}, s{sT0}, s{sT1}")
    E(f"s_lshl_b32 s{sT0}, s{sT0}, 5")
    E(f"s_add_u32 s{sT0}, s{sT0}, {WS_Q}")
    E(f"buffer_load_dwordx4 v[{vQ}:{vQ+3}], v2, s[{S_WS}:{S_WS+3}], s{sT0} offen")
    E(f"v_lshlrev_b32 v{vDMA}, 4, v{vLANE}")
    E(f"s_lshl_b32 s{sT1}, s{sW}, 10")
    E(f"s_lshl_b32 s{sT0}, s{sH}, 16")
    E(f"s_add_u32 s{sT0}, s{sT0}, s{sT1}")
    E(f"s_mov_b32 s48, s{sT1}")
    E(f"s_add_u32 s49, s{sT0}, {WS_K}")
    def dma_chunk():
        E(f"s_mov_b32 m0, s48")
        E(f"s_add_u32 s50, s49, {WS_V - WS_K}")
        E(f"buffer_load_dwordx4 v{vDMA}, s[{S_WS}:{S_WS+3}], s49 offen lds")
        E(f"s_add_u32 m0, s48, 65536")
        E(f"s_add_u32 s48, s48, 8192")
        E(f"buffer_load_dwordx4 v{vDMA}, s[{S_WS}:{S_WS+3}], s50 offen lds")
        E(f"s_add_u32 s49, s49, 8192")
    dma_chunk()
    E(f"v_and_b32 v2, 31, v{vLANE}")
    E(f"v_cmp_eq_u32 vcc, 16, v2")
    E(f"v_mov_b32 v3, 0x3f803f80")
    E("s_nop 0")
    E(f"v_cndmask_b32 v3, 0, v3, vcc")
    for i in range(16):
        E(f"v_mov_b32 v{vVF+i}, v3")
    E("s_mov_b32 s52, 0x0000ffff")
    E("s_mov_b32 s53, 0x0000ffff")
    E(f"s_mov_b32 s{sPASS}, 0")
    E.stamp()
    E("s_waitcnt vmcnt(0)")
    E("s_barrier")
    E.stamp()
    E(f"v_lshlrev_b32 v{vKA}, 4, v{vLANE}")
    E(f"ds_read_b128 v[{vKF}:{vKF+3}], v{vKA}")
    E("s_waitcnt lgkmcnt(0)")
    E(f"v_mfma_f32_32x32x16_bf16 v[{vS}:{vS+15}], v[{vKF}:{vKF+3}], v[{vQ}:{vQ+3}], 0")
    E("s_nop 15")
    def rowmax16(src, dst):
        E(f"v_max3_f32 v{dst}, v{src}, v{src+1}, v{src+2}")
        for i in range(3, 15, 2):
            E(f"v_max3_f32 v{dst}, v{dst}, v{src+i}, v{src+i+1}")
        E(f"v_max_f32 v{dst}, v{dst}, v{src+15}")
    def cross_half_max(reg):
        E(f"v_mov_b32 v{vT+1}, v{reg}")
        E(f"v_mov_b32 v{vT+2}, v{reg}")
        E("s_nop 1")
        E(f"v_permlane32_swap_b32 v{vT+1}, v{vT+2}")
        E("s_nop 1")
        E(f"v_max_f32 v{reg}, v{vT+1}, v{vT+2}")
    rowmax16(vS, vT)
    cross_half_max(vT)
    E.label("K2_RUN")
    for i in range(16):
        E(f"v_sub_f32 v{vC+i}, 0, v{vT}")
    for i in range(16):
        E(f"v_mov_b32 v{vO+i}, 0")
    E(f"v_lshlrev_b32 v{vKA}, 4, v{vLANE}")
    E(f"v_and_b32 v2, 31, v{vLANE}")
    E(f"v_lshrrev_b32 v3, 5, v{vLANE}")
    E(f"v_lshlrev_b32 v2, 4, v2")
    E(f"v_lshl_add_u32 v2, v3, 8, v2")
    E(f"v_add_u32 v{vVA}, 65536, v2")
    X_NOLDS = int(os.environ.get("X_NOLDS", "0"))
    X_NOEXEC = int(os.environ.get("X_NOEXEC", "0"))
    def rdK(buf, tile_off):
        if X_NOLDS: return
        E(f"ds_read_b128 v[{vKF+4*buf}:{vKF+4*buf+3}], v{vKA} offset:{tile_off*1024}")
    def rdV(buf, tile_off):
        if X_NOLDS: return
        if not X_NOEXEC: E("s_mov_b64 exec, s[52:53]")
        E(f"ds_read_b128 v[{vVF+8*buf}:{vVF+8*buf+3}], v{vVA} offset:{tile_off*1024}")
        E(f"ds_read_b128 v[{vVF+8*buf+4}:{vVF+8*buf+7}], v{vVA} offset:{tile_off*1024+512}")
        if not X_NOEXEC: E("s_mov_b64 exec, -1")
    def qk(sbuf, kbuf):
        E(f"v_mfma_f32_32x32x16_bf16 v[{vS+16*sbuf}:{vS+16*sbuf+15}], v[{vKF+4*kbuf}:{vKF+4*kbuf+3}], v[{vQ}:{vQ+3}], v[{vC}:{vC+15}]")
    rdK(0, 0); rdK(1, 1); rdV(0, 0)
    E("s_waitcnt lgkmcnt(3)")
    qk(0, 0)
    E(f"s_mov_b32 s{sIT}, 0")
    E.label("K2_LOOP")
    E(f"s_cmp_lg_u32 s{sPASS}, 0")
    E("s_cbranch_scc1 K2_NODMA")
    E(f"s_cmp_ge_u32 s{sIT}, 7")
    E("s_cbranch_scc1 K2_NODMA")
    dma_chunk()
    E.label("K2_NODMA")
    PF = int(os.environ.get("PF", "1"))
    if PF:
        E(f"s_cmp_lg_u32 s{sIT}, 16")
        E("s_cbranch_scc1 K2_NOPF")
        E(f"s_lshl_b32 s58, s{sH}, 3")
        E(f"s_add_u32 s58, s58, s{sW}")
        E(f"s_lshl_b32 s59, s58, 11")
        for j in range(2):
            E(f"buffer_load_dwordx4 v[124:127], v{vDMA}, s[24:27], s59 offen offset:{1024*j}")
        E(f"s_mul_i32 s59, s58, 5504")
        for j in range(3):
            E(f"buffer_load_dwordx4 v[124:127], v{vDMA}, s[28:31], s59 offen offset:{1024*j}")
        E(f"s_add_u32 s59, s59, 3072")
        for j in range(3):
            E(f"buffer_load_dwordx4 v[124:127], v{vDMA}, s[28:31], s59 offen offset:{1024*j}")
        E(f"s_mul_i32 s59, s58, 2752")
        E(f"s_mul_i32 s58, s{sQB}, {256*2752}")
        E(f"s_add_u32 s59, s59, s58")
        E(f"s_add_u32 s59, s59, {WS_ACT}")
        for j in range(3):
            E(f"buffer_load_dwordx4 v[124:127], v{vDMA}, s[{S_WS}:{S_WS+3}], s59 offen offset:{1024*j}")
        E.label("K2_NOPF")
    for half in range(2):
        X = half; Y = half ^ 1
        E("s_waitcnt lgkmcnt(2)")
        qk(Y, Y)
        rdK(X, half + 2)
        s = vS + 16 * X
        for i in range(8):
            E(f"v_exp_f32 v{s+i}, v{s+i}")
        for i in range(4):
            E(f"v_cvt_pk_bf16_f32 v{vP+i}, v{s+2*i}, v{s+2*i+1}")
        E("s_waitcnt lgkmcnt(1)")
        for i in range(8, 10):
            E(f"v_exp_f32 v{s+i}, v{s+i}")
        E(f"v_mfma_f32_32x32x16_bf16 v[{vO}:{vO+15}], v[{vVF+8*X}:{vVF+8*X+3}], v[{vP}:{vP+3}], v[{vO}:{vO+15}]")
        for i in range(10, 16):
            E(f"v_exp_f32 v{s+i}, v{s+i}")
        for i in range(4, 8):
            E(f"v_cvt_pk_bf16_f32 v{vP+i}, v{s+2*i}, v{s+2*i+1}")
        rdV(Y, half + 1)
        E(f"v_mfma_f32_32x32x16_bf16 v[{vO}:{vO+15}], v[{vVF+8*X+4}:{vVF+8*X+7}], v[{vP+4}:{vP+7}], v[{vO}:{vO+15}]")
    E(f"v_add_u32 v{vKA}, 2048, v{vKA}")
    E(f"v_add_u32 v{vVA}, 2048, v{vVA}")
    E(f"s_add_u32 s{sIT}, s{sIT}, 1")
    E(f"s_cmp_lg_u32 s{sPASS}, 0")
    E("s_cbranch_scc1 K2_NOBAR")
    E(f"s_cmp_eq_u32 s{sIT}, 3")
    E("s_cbranch_scc0 K2_B2")
    E.stamp()
    E("s_waitcnt vmcnt(4)")
    E("s_barrier")
    E.stamp()
    E("s_branch K2_NOBAR")
    E.label("K2_B2")
    E(f"s_cmp_eq_u32 s{sIT}, 7")
    E("s_cbranch_scc0 K2_B3")
    E("s_waitcnt vmcnt(8)")
    E("s_barrier")
    E("s_branch K2_NOBAR")
    E.label("K2_B3")
    E(f"s_cmp_eq_u32 s{sIT}, 15")
    E("s_cbranch_scc0 K2_NOBAR")
    E("s_waitcnt vmcnt(0)")
    E("s_barrier")
    E.label("K2_NOBAR")
    E(f"s_cmp_lt_u32 s{sIT}, 32")
    E("s_cbranch_scc1 K2_LOOP")
    E("s_waitcnt lgkmcnt(0)")
    E("s_nop 15")
    E.stamp()
    E(f"v_mov_b32 v{vT+1}, v{vO+8}")
    E(f"v_mov_b32 v{vT+2}, v{vO+8}")
    E("s_nop 1")
    E(f"v_permlane32_swap_b32 v{vT+1}, v{vT+2}")
    E(f"s_cmp_lg_u32 s{sPASS}, 0")
    E("s_cbranch_scc1 K2_FIN")
    E(f"v_max3_f32 v{vT+3}, |v{vO}|, |v{vO+1}|, |v{vO+2}|")
    E(f"v_max3_f32 v{vT+3}, v{vT+3}, |v{vO+3}|, |v{vO+4}|")
    E(f"v_max3_f32 v{vT+3}, v{vT+3}, |v{vO+5}|, |v{vO+6}|")
    E(f"v_max_f32 v{vT+3}, v{vT+3}, |v{vO+7}|")
    E(f"s_mov_b32 s54, 0x5d800000")
    E(f"s_mov_b32 s55, 0x7f000000")
    E(f"v_cmp_nlt_f32 vcc, v{vT+1}, s54")
    E(f"v_cmp_nlt_f32 s[56:57], v{vT+3}, s55")
    E("s_nop 1")
    E("s_or_b64 vcc, vcc, s[56:57]")
    E("s_cbranch_vccz K2_FIN")
    E(f"v_lshlrev_b32 v{vKA}, 4, v{vLANE}")
    E(f"v_mov_b32 v{vT}, 0xff800000")
    E(f"s_mov_b32 s{sIT}, 0")
    E.label("K2_MAXLOOP")
    E(f"ds_read_b128 v[{vKF}:{vKF+3}], v{vKA}")
    E("s_waitcnt lgkmcnt(0)")
    E(f"v_mfma_f32_32x32x16_bf16 v[{vS}:{vS+15}], v[{vKF}:{vKF+3}], v[{vQ}:{vQ+3}], 0")
    E("s_nop 15")
    for i in range(0, 16, 2):
        E(f"v_max3_f32 v{vT}, v{vT}, v{vS+i}, v{vS+i+1}")
    E(f"v_add_u32 v{vKA}, 1024, v{vKA}")
    E(f"s_add_u32 s{sIT}, s{sIT}, 1")
    E(f"s_cmp_lt_u32 s{sIT}, 64")
    E("s_cbranch_scc1 K2_MAXLOOP")
    cross_half_max(vT)
    E(f"s_mov_b32 s{sPASS}, 1")
    E("s_branch K2_RUN")
    E.label("K2_FIN")
    E(f"v_rcp_f32 v{vT+1}, v{vT+1}")
    E("s_nop 0")
    for i in range(8):
        E(f"v_mul_f32 v{vO+i}, v{vO+i}, v{vT+1}")
    for i in range(4):
        E(f"v_cvt_pk_bf16_f32 v{vP+i}, v{vO+2*i}, v{vO+2*i+1}")
    E(f"v_and_b32 v2, 31, v{vLANE}")
    E(f"v_lshrrev_b32 v3, 5, v{vLANE}")
    E(f"v_lshlrev_b32 v2, 10, v2")
    E(f"v_lshl_add_u32 v2, v3, 4, v2")
    E(f"s_lshl_b32 s{sT0}, s{sQB}, 8")
    E(f"s_lshl_b32 s{sT1}, s{sW}, 5")
    E(f"s_add_u32 s{sT0}, s{sT0}, s{sT1}")
    E(f"s_lshl_b32 s{sT0}, s{sT0}, 10")
    E(f"s_lshl_b32 s{sT1}, s{sH}, 5")
    E(f"s_add_u32 s{sT0}, s{sT0}, s{sT1}")
    E(f"s_add_u32 s{sT0}, s{sT0}, {WS_O}")
    E(f"buffer_store_dwordx4 v[{vP}:{vP+3}], v2, s[{S_WS}:{S_WS+3}], s{sT0} offen")
    E.stamp()
    E.dump_stamps(S_WS, sW, 1)
    E.label("K2_END")
    E("s_endpgm")
    return name, 128

def gen_k3(E):
    name = "k3_out_kernel"
    kernel_start(E, name)
    vm = VM(E)
    NS = 9; SLOT = 16384; AB = 8192
    S_WS, S_WO, S_W2, S_OUT = 20, 24, 28, 32
    sW, sMT, sNT, sT0, sT1, sAM0, sBM0, sROW, sKH, sWQ = 40, 41, 42, 43, 44, 45, 46, 47, 48, 49
    vLANE = 1
    vAD1 = 8
    vAD2 = 9
    vBD = 10
    vAA = 12
    vBA = 14
    vG = 15
    vAF = 24
    vBF = 32
    vACC1 = 48
    vACC2 = 64
    vT = 80
    E("s_cmp_ge_u32 s2, 256")
    E("s_cbranch_scc1 K3_END")
    E("s_load_dwordx2 s[4:5], s[0:1], 16")
    E("s_load_dwordx2 s[6:7], s[0:1], 48")
    E("s_load_dwordx2 s[8:9], s[0:1], 64")
    E("s_load_dwordx2 s[14:15], s[0:1], 80")
    E(f"v_and_b32 v{vLANE}, 63, v0")
    E("v_lshrrev_b32 v2, 6, v0")
    E("s_nop 0")
    E(f"v_readfirstlane_b32 s{sW}, v2")
    E(f"s_and_b32 s{sT0}, s2, 7")
    E(f"s_lshr_b32 s{sT1}, s2, 3")
    E(f"s_lshl_b32 s{sMT}, s{sT0}, 2")
    E(f"s_and_b32 s{sT0}, s{sT1}, 3")
    E(f"s_add_u32 s{sMT}, s{sMT}, s{sT0}")
    E(f"s_lshr_b32 s{sNT}, s{sT1}, 2")
    E(f"s_lshr_b32 s{sKH}, s{sW}, 2")
    E(f"s_and_b32 s{sWQ}, s{sW}, 3")
    E(f"s_lshl_b32 s{sT0}, s{sW}, 3")
    E(f"v_lshrrev_b32 v2, 3, v{vLANE}")
    E(f"v_add_u32 v2, s{sT0}, v2")
    E(f"v_lshrrev_b32 v3, 1, v2")
    E(f"v_and_b32 v3, 7, v3")
    E(f"v_and_b32 v4, 7, v{vLANE}")
    E(f"v_xor_b32 v3, v3, v4")
    E(f"s_lshl_b32 s{sT0}, s{sMT}, 6")
    E(f"v_add_u32 v5, s{sT0}, v2")
    E(f"v_lshlrev_b32 v6, 10, v5")
    E(f"v_lshl_add_u32 v6, v3, 4, v6")
    E(f"v_add_u32 v{vAD1}, {WS_O}, v6")
    E(f"v_mul_u32_u24 v6, 2752, v5")
    E(f"v_lshl_add_u32 v6, v3, 4, v6")
    E(f"v_add_u32 v{vAD2}, {WS_ACT}, v6")
    E(f"v_lshlrev_b32 v3, 1, v2")
    E(f"v_and_b32 v3, 4, v3")
    E(f"v_xor_b32 v3, v3, v4")
    E(f"v_lshlrev_b32 v2, 10, v2")
    E(f"v_lshl_add_u32 v2, v3, 4, v2")
    E(f"s_lshl_b32 s{sT0}, s{sNT}, 7")
    E(f"v_add_u32 v{vBD}, s{sT0}, v2")
    E(f"s_lshl_b32 s{sAM0}, s{sW}, 10")
    E(f"s_add_u32 s{sBM0}, s{sAM0}, {AB}")
    E("s_waitcnt lgkmcnt(0)")
    E.stamp()
    make_srd(E, S_WS, 14, WS_SIZE)
    make_srd(E, S_WO, 4, 512 * 1024)
    make_srd(E, S_W2, 6, 1376 * 1024)
    make_srd(E, S_OUT, 8, 2048 * 1024)
    NST = 30
    def issue_stage(st):
        slot = st % NS
        if st < 8:
            ad, bs, ka = vAD1, S_WO, st
        else:
            ad, bs, ka = vAD2, S_W2, st - 8
        E(f"s_mov_b32 s{sT0}, {ka*128}")
        E(f"s_add_u32 m0, s{sAM0}, {slot*SLOT}")
        E("s_nop 0")
        E(f"buffer_load_dwordx4 v{ad}, s[{S_WS}:{S_WS+3}], s{sT0} offen lds"); vm.issue(st)
        E(f"s_mov_b32 s{sT0}, {ka*65536}")
        E(f"s_add_u32 m0, s{sBM0}, {slot*SLOT}")
        E("s_nop 0")
        E(f"buffer_load_dwordx4 v{vBD}, s[{bs}:{bs+3}], s{sT0} offen lds"); vm.issue(st)
    PD = NS - 1
    for st in range(PD):
        issue_stage(st)
    E(f"s_and_b32 s{sT0}, s{sWQ}, 1")
    E(f"s_lshl_b32 s{sT0}, s{sT0}, 5")
    E(f"s_lshl_b32 s{sT1}, s{sMT}, 6")
    E(f"s_add_u32 s{sROW}, s{sT0}, s{sT1}")
    E(f"s_lshl_b32 s{sT0}, s{sROW}, 2")
    E(f"s_add_u32 s{sT0}, s{sT0}, {WS_G}")
    E(f"v_and_b32 v2, 31, v{vLANE}")
    E(f"v_lshlrev_b32 v2, 2, v2")
    E(f"buffer_load_dword v{vG}, v2, s[{S_WS}:{S_WS+3}], s{sT0} offen"); vm.issue("g")
    E.stamp()
    E(f"s_and_b32 s{sT0}, s{sWQ}, 1")
    E(f"s_lshl_b32 s{sT0}, s{sT0}, 5")
    E(f"v_and_b32 v2, 31, v{vLANE}")
    E(f"v_add_u32 v2, s{sT0}, v2")
    E(f"v_lshrrev_b32 v3, 1, v2")
    E(f"v_and_b32 v3, 7, v3")
    E(f"v_lshrrev_b32 v4, 5, v{vLANE}")
    E(f"v_lshlrev_b32 v2, 7, v2")
    E(f"s_lshl_b32 s{sT0}, s{sKH}, 2")
    E(f"v_add_u32 v4, s{sT0}, v4")
    for t in range(2):
        E(f"v_add_u32 v5, {2*t}, v4")
        E(f"v_xor_b32 v5, v5, v3")
        E(f"v_lshl_add_u32 v{vAA+t}, v5, 4, v2")
    E(f"v_lshrrev_b32 v2, 5, v{vLANE}")
    E(f"v_lshlrev_b32 v2, 2, v2")
    E(f"v_bfe_u32 v3, v{vLANE}, 2, 2")
    E(f"v_add_u32 v2, v2, v3")
    E(f"s_lshl_b32 s{sT0}, s{sKH}, 5")
    E(f"v_add_u32 v2, s{sT0}, v2")
    E(f"v_lshlrev_b32 v2, 7, v2")
    E(f"v_and_b32 v4, 1, v{vLANE}")
    E(f"v_lshl_add_u32 v2, v4, 3, v2")
    E(f"v_add_u32 v2, {AB}, v2")
    E(f"v_bfe_u32 v4, v{vLANE}, 4, 1")
    E(f"v_lshlrev_b32 v4, 1, v4")
    E(f"v_bfe_u32 v5, v{vLANE}, 1, 1")
    E(f"v_add_u32 v4, v4, v5")
    E(f"s_lshr_b32 s{sT0}, s{sWQ}, 1")
    E(f"s_lshl_b32 s{sT0}, s{sT0}, 2")
    E(f"v_add_u32 v4, s{sT0}, v4")
    E(f"v_lshlrev_b32 v3, 1, v3")
    E(f"v_and_b32 v3, 4, v3")
    E(f"v_xor_b32 v4, v4, v3")
    E(f"v_lshl_add_u32 v{vBA}, v4, 4, v2")
    for i in range(32):
        E(f"v_mov_b32 v{vACC1+i}, 0")
    def frag_reads(t, buf):
        E(f"ds_read_b128 v[{vAF+4*buf}:{vAF+4*buf+3}], v{vAA+t}")
        for e in range(2):
            off = (16 * t + 8 * e) * 128
            d = vBF + 4 * buf + 2 * e
            E(f"ds_read_b64_tr_b16 v[{d}:{d+1}], v{vBA} offset:{off}")
    def bump(st):
        delta = SLOT if (st % NS) != 0 else -(NS - 1) * SLOT
        for r in [vAA, vAA + 1, vBA]:
            if delta > 0:
                E(f"v_add_u32 v{r}, {delta}, v{r}")
            else:
                E(f"v_subrev_u32 v{r}, {-delta}, v{r}")
    vm.wait(0)
    E("s_barrier")
    E.stamp()
    frag_reads(0, 0)
    for st in range(NST):
        acc = vACC1 if st < 8 else vACC2
        lastst = (st == NST - 1)
        if lastst:
            E(f"s_cmp_lg_u32 s{sKH}, 0")
            E("s_cbranch_scc1 K3_SKIPLAST")
        frag_reads(1, 1)
        E("s_waitcnt lgkmcnt(3)")
        E(f"v_mfma_f32_32x32x16_bf16 v[{acc}:{acc+15}], v[{vBF}:{vBF+3}], v[{vAF}:{vAF+3}], v[{acc}:{acc+15}]")
        if not lastst:
            vm.wait(st + 1)
            E("s_barrier")
            if st + 1 in (1, 2, 4, 8, 12, 16, 20, 24, 29): E.stamp()
            if st + PD < NST:
                issue_stage(st + PD)
            bump(st + 1)
            frag_reads(0, 0)
            E("s_waitcnt lgkmcnt(3)")
        else:
            E("s_waitcnt lgkmcnt(0)")
        E(f"v_mfma_f32_32x32x16_bf16 v[{acc}:{acc+15}], v[{vBF+4}:{vBF+7}], v[{vAF+4}:{vAF+7}], v[{acc}:{acc+15}]")
        if lastst:
            E.label("K3_SKIPLAST")
            E("s_waitcnt lgkmcnt(0)")
    E("s_nop 15")
    E("s_barrier")
    E(f"v_lshlrev_b32 v2, 4, v{vLANE}")
    E(f"s_lshl_b32 s{sT0}, s{sWQ}, 13")
    E(f"v_add_u32 v2, s{sT0}, v2")
    E(f"s_cmp_eq_u32 s{sKH}, 0")
    E("s_cbranch_scc1 K3_RD")
    for i in range(8):
        E(f"ds_write_b128 v2, v[{vACC1+4*i}:{vACC1+4*i+3}] offset:{1024*i}")
    E("s_waitcnt lgkmcnt(0)")
    E("s_barrier")
    E("s_branch K3_END")
    E.label("K3_RD")
    E("s_barrier")
    for i in range(8):
        E(f"ds_read_b128 v[{vT+16+4*i}:{vT+16+4*i+3}], v2 offset:{1024*i}")
    E("s_waitcnt lgkmcnt(0)")
    for i in range(0, 32, 2):
        E(f"v_pk_add_f32 v[{vACC1+i}:{vACC1+i+1}], v[{vACC1+i}:{vACC1+i+1}], v[{vT+16+i}:{vT+16+i+1}]")
    E.stamp()
    E(f"v_sub_f32 v{vT}, 1.0, v{vG}")
    E(f"v_cvt_pk_bf16_f32 v{vT}, v{vT}, v{vT}")
    E(f"v_lshlrev_b32 v{vT}, 16, v{vT}")
    def rnd_pair(r):
        E(f"v_cvt_pk_bf16_f32 v{vT+1}, v{r}, v{r+1}")
        E(f"v_lshlrev_b32 v{r}, 16, v{vT+1}")
        E(f"v_and_b32 v{r+1}, 0xffff0000, v{vT+1}")
    for i in range(0, 16, 2):
        rnd_pair(vACC1 + i); rnd_pair(vACC2 + i)
        E(f"v_mul_f32 v{vACC1+i}, v{vG}, v{vACC1+i}")
        E(f"v_mul_f32 v{vACC1+i+1}, v{vG}, v{vACC1+i+1}")
        E(f"v_mul_f32 v{vACC2+i}, v{vT}, v{vACC2+i}")
        E(f"v_mul_f32 v{vACC2+i+1}, v{vT}, v{vACC2+i+1}")
        rnd_pair(vACC1 + i); rnd_pair(vACC2 + i)
        E(f"v_add_f32 v{vACC1+i}, v{vACC1+i}, v{vACC2+i}")
        E(f"v_add_f32 v{vACC1+i+1}, v{vACC1+i+1}, v{vACC2+i+1}")
        E(f"v_cvt_pk_bf16_f32 v{vT+4+i//2}, v{vACC1+i}, v{vACC1+i+1}")
    E(f"v_and_b32 v2, 31, v{vLANE}")
    E(f"v_lshrrev_b32 v3, 5, v{vLANE}")
    E(f"v_lshlrev_b32 v2, 10, v2")
    E(f"v_lshl_add_u32 v2, v3, 3, v2")
    E(f"s_lshl_b32 s{sT0}, s{sROW}, 10")
    E(f"s_lshl_b32 s{sT1}, s{sNT}, 7")
    E(f"s_add_u32 s{sT0}, s{sT0}, s{sT1}")
    E(f"s_lshr_b32 s{sT1}, s{sWQ}, 1")
    E(f"s_lshl_b32 s{sT1}, s{sT1}, 6")
    E(f"s_add_u32 s{sT0}, s{sT0}, s{sT1}")
    for q in range(4):
        E(f"buffer_store_dwordx2 v[{vT+4+2*q}:{vT+5+2*q}], v2, s[{S_OUT}:{S_OUT+3}], s{sT0} offen offset:{16*q}")
    E.stamp()
    E.dump_stamps(S_WS, sW, 2)
    E.label("K3_END")
    E("s_endpgm")
    return name, 128

def main():
    hdr = open(f"cdna_kernels/{NAME}.s.ref").read().split("\n")
    head = [l for l in hdr if l.startswith(";") and "@launch" not in l]
    E = Asm()
    k1, v1 = gen_k1(E)
    k2, v2 = gen_k2(E)
    k3, v3 = gen_k3(E)
    out = "\n".join(head) + "\n"
    out += f"; @launch kernel={k1} grid=(256,1,1) block=(512,1,1) lds=163840\n"
    out += f"; @launch kernel={k2} grid=(256,1,1) block=(512,1,1) lds=131072\n"
    out += f"; @launch kernel={k3} grid=(256,1,1) block=(512,1,1) lds={9*16384}\n"
    out += '.amdgcn_target "amdgcn-amd-amdhsa--gfx950"\n.text\n'
    out += E.text()
    out += '.section .rodata,"a"\n'
    out += kernel_desc(k1, v1) + kernel_desc(k2, v2) + kernel_desc(k3, v3)
    open(OUT, "w").write(out)
    print("wrote", OUT, len(out))

if __name__ == "__main__":
    main()
```

```python
import sys, math

NAME = "gated_mix__softmax_full_mha__dense_activation_mish__prompt"
OUT = f"cdna_kernels/{NAME}.s"
import os as _os
if int(_os.environ.get("DIAG","0")): OUT = "diag.s"

WS_Q   = 0
WS_K   = 2 << 20
WS_V   = 4 << 20
WS_O   = 6 << 20
WS_ACT = 8 << 20
WS_G   = 14 << 20
WS_B   = 15 << 20
WS_SIZE = 18 << 20

LOG2E = 1.4426950408889634
QSCALE = 0.25 * LOG2E

def f32bits(x):
    import struct
    return struct.unpack("<I", struct.pack("<f", x))[0]

import os
DIAG = int(os.environ.get("DIAG", "0"))
WS_DBG = 17 << 20
class Asm:
    def __init__(self):
        self.lines = []
        self.nstamp = 0
    def stamp(self):
        if not DIAG: return
        r = 70 + 2 * self.nstamp
        assert r < 100
        self(f"s_memtime s[{r}:{r+1}]")
        self("s_waitcnt lgkmcnt(0)")
        self.nstamp += 1
    def dump_stamps(self, srd, swave, kidx):
        if not DIAG: return
        self(f"s_lshl_b32 s68, s2, 4")
        self(f"s_add_u32 s68, s68, s{swave}")
        self(f"s_lshl_b32 s68, s68, 6")
        self(f"s_add_u32 s68, s68, {WS_DBG + kidx * 0x40000}")
        self(f"v_mov_b32 v2, 0")
        for i in range(self.nstamp):
            self(f"v_mov_b32 v3, s{70+2*i}")
            self(f"buffer_store_dword v3, v2, s[{srd}:{srd+3}], s68 offen offset:{4*i}")
            self("s_nop 1")
        self.nstamp = 0
    def __call__(self, s):
        self.lines.append("    " + s)
    def label(self, s):
        self.lines.append(s + ":")
    def raw(self, s):
        self.lines.append(s)
    def comment(self, s):
        self.lines.append("    ; " + s)
    def text(self):
        return "\n".join(self.lines) + "\n"

class VM:
    def __init__(self, E):
        self.E = E; self.ops = []
    def issue(self, tag):
        self.ops.append(tag)
    def wait(self, tag):
        idx = max(i for i, t in enumerate(self.ops) if t == tag)
        n = len(self.ops) - 1 - idx
        assert n <= 63
        self.E(f"s_waitcnt vmcnt({n})")
    def snap(self):
        return list(self.ops)
    def restore(self, s):
        self.ops = list(s)

def vr(a, n=1):
    return f"v{a}" if n == 1 else f"v[{a}:{a+n-1}]"
def sr(a, n=1):
    return f"s{a}" if n == 1 else f"s[{a}:{a+n-1}]"

def kernel_start(E, name):
    E.raw(f".globl {name}")
    E.raw(".p2align 8")
    E.raw(f".type {name},@function")
    E.label(name)

def kernel_desc(name, vgpr, sgpr=102):
    acc = (vgpr + 3) // 4 * 4
    return f""".p2align 6
.amdhsa_kernel {name}
  .amdhsa_next_free_vgpr {vgpr}
  .amdhsa_next_free_sgpr {sgpr}
  .amdhsa_accum_offset {acc}
  .amdhsa_group_segment_fixed_size 0
  .amdhsa_kernarg_size 88
  .amdhsa_user_sgpr_count 2
  .amdhsa_user_sgpr_kernarg_segment_ptr 1
  .amdhsa_system_sgpr_workgroup_id_x 1
.end_amdhsa_kernel
"""

def make_srd(E, d, base, size):
    E(f"s_mov_b32 s{d}, s{base}")
    E(f"s_and_b32 s{d+1}, s{base+1}, 0xffff")
    E(f"s_mov_b32 s{d+2}, {size}")
    E(f"s_mov_b32 s{d+3}, 0x00020000")

def gen_k1(E):
    name = "k1_proj_kernel"
    kernel_start(E, name)
    vm = VM(E)
    NS = 5; PD = 4
    SLOT = 28672; XB = 16384
    NST = 8
    S_X, S_W, S_WS, S_GW = 20, 24, 28, 36
    sW, sMT, sNT, sT0, sT1, sT2 = 40, 41, 42, 45, 46, 47
    sXM0, sWM0, sCOL, sROW, sROT = 48, 49, 51, 53, 55
    vLANE = 1
    vXD = 8
    vWD = 12
    vXA = 16
    vWA = 20
    vG = 22
    vGX = 24
    vXF = 48
    vWF = 56
    vACC = 80
    E("s_cmp_ge_u32 s2, 256")
    E("s_cbranch_scc1 K1_END")
    E("s_load_dwordx4 s[4:7], s[0:1], 0")
    E("s_load_dwordx2 s[12:13], s[0:1], 56")
    E("s_load_dwordx2 s[14:15], s[0:1], 80")
    E(f"v_and_b32 v{vLANE}, 63, v0")
    E("v_lshrrev_b32 v2, 6, v0")
    E("s_nop 0")
    E(f"v_readfirstlane_b32 s{sW}, v2")
    E(f"s_and_b32 s{sT0}, s2, 7")
    E(f"s_lshr_b32 s{sT1}, s2, 3")
    E(f"s_and_b32 s{sMT}, s{sT0}, 3")
    E(f"s_lshl_b32 s{sMT}, s{sMT}, 2")
    E(f"s_and_b32 s{sT2}, s{sT1}, 3")
    E(f"s_add_u32 s{sMT}, s{sMT}, s{sT2}")
    E(f"s_lshr_b32 s{sNT}, s{sT0}, 2")
    E(f"s_lshl_b32 s{sNT}, s{sNT}, 3")
    E(f"s_lshr_b32 s{sT2}, s{sT1}, 2")
    E(f"s_add_u32 s{sNT}, s{sNT}, s{sT2}")
    E(f"s_mul_i32 s{sCOL}, s{sNT}, 96")
    E(f"s_add_u32 s{sROT}, s{sMT}, s{sNT}")
    for t in range(4):
        E(f"s_lshl_b32 s{sT0}, s{sW}, 5")
        E(f"s_add_u32 s{sT0}, s{sT0}, {8*t}")
        E(f"v_lshrrev_b32 v2, 3, v{vLANE}")
        E(f"v_add_u32 v2, s{sT0}, v2")
        E(f"v_lshrrev_b32 v3, 1, v2")
        E(f"v_and_b32 v3, 7, v3")
        E(f"v_and_b32 v4, 7, v{vLANE}")
        E(f"v_xor_b32 v3, v3, v4")
        E(f"s_lshl_b32 s{sT0}, s{sMT}, 7")
        E(f"v_add_u32 v2, s{sT0}, v2")
        E(f"v_lshlrev_b32 v2, 10, v2")
        E(f"v_lshl_add_u32 v{vXD+t}, v3, 4, v2")
    for t in range(3):
        E(f"s_mul_i32 s{sT0}, s{sW}, 192")
        E(f"s_add_u32 s{sT0}, s{sT0}, {64*t}")
        E(f"v_add_u32 v2, s{sT0}, v{vLANE}")
        E(f"v_mul_u32_u24 v3, 5462, v2")
        E(f"v_lshrrev_b32 v3, 16, v3")
        E(f"v_mul_u32_u24 v4, 12, v3")
        E(f"v_sub_u32 v4, v2, v4")
        E(f"v_mul_u32_u24 v3, 3072, v3")
        E(f"v_lshl_add_u32 v3, v4, 4, v3")
        E(f"s_lshl_b32 s{sT0}, s{sCOL}, 1")
        E(f"v_add_u32 v{vWD+t}, s{sT0}, v3")
    E(f"s_lshl_b32 s{sXM0}, s{sW}, 12")
    E(f"s_mul_i32 s{sWM0}, s{sW}, 3072")
    E(f"s_add_u32 s{sWM0}, s{sWM0}, {XB}")
    E(f"s_lshl_b32 s{sT0}, s{sW}, 5")
    E(f"s_lshl_b32 s{sROW}, s{sMT}, 7")
    E(f"s_add_u32 s{sROW}, s{sROW}, s{sT0}")
    E("s_waitcnt lgkmcnt(0)")
    E.stamp()
    make_srd(E, S_X, 4, 2048 * 1024)
    make_srd(E, S_W, 6, 512 * 3072)
    def dma(st, j):
        slot = st % NS
        E(f"s_add_u32 s{sT0}, s{sROT}, {st}")
        E(f"s_and_b32 s{sT0}, s{sT0}, 7")
        if j < 4:
            E(f"s_lshl_b32 s{sT0}, s{sT0}, 7")
            E(f"s_add_u32 m0, s{sXM0}, {slot*SLOT + j*1024}")
            E("s_nop 0")
            E(f"buffer_load_dwordx4 v{vXD+j}, s[{S_X}:{S_X+3}], s{sT0} offen lds")
        else:
            t = j - 4
            E(f"s_mul_i32 s{sT0}, s{sT0}, {64*3072}")
            E(f"s_add_u32 m0, s{sWM0}, {slot*SLOT + t*1024}")
            E("s_nop 0")
            E(f"buffer_load_dwordx4 v{vWD+t}, s[{S_W}:{S_W+3}], s{sT0} offen lds")
        vm.issue(("st", st))
    for st in range(PD):
        for j in range(7):
            dma(st, j)
    make_srd(E, S_WS, 14, WS_SIZE)
    make_srd(E, S_GW, 12, 1024)
    E(f"s_lshl_b32 s{sT0}, s2, 3")
    E(f"s_lshl_b32 s{sT1}, s{sW}, 1")
    E(f"s_add_u32 s{sT0}, s{sT0}, s{sT1}")
    E(f"s_lshl_b32 s{sT0}, s{sT0}, 10")
    E(f"v_lshlrev_b32 v2, 4, v{vLANE}")
    E(f"buffer_load_dwordx4 v[{vGX}:{vGX+3}], v2, s[{S_X}:{S_X+3}], s{sT0} offen"); vm.issue("misc")
    E(f"buffer_load_dwordx4 v[{vGX+4}:{vGX+7}], v2, s[{S_X}:{S_X+3}], s{sT0} offen offset:1024"); vm.issue("misc")
    E(f"buffer_load_dwordx4 v[{vGX+8}:{vGX+11}], v2, s[{S_GW}:{S_GW+3}], 0 offen"); vm.issue("misc")
    E.stamp()
    E(f"s_lshl_b32 s{sT0}, s{sW}, 5")
    E(f"v_and_b32 v2, 31, v{vLANE}")
    E(f"v_add_u32 v2, s{sT0}, v2")
    E(f"v_lshrrev_b32 v3, 1, v2")
    E(f"v_and_b32 v3, 7, v3")
    E(f"v_lshrrev_b32 v4, 5, v{vLANE}")
    E(f"v_lshlrev_b32 v2, 7, v2")
    for t in range(4):
        E(f"v_add_u32 v5, {2*t}, v4")
        E(f"v_xor_b32 v5, v5, v3")
        E(f"v_lshl_add_u32 v{vXA+t}, v5, 4, v2")
    E(f"v_lshrrev_b32 v2, 5, v{vLANE}")
    E(f"v_lshlrev_b32 v2, 3, v2")
    E(f"v_bfe_u32 v3, v{vLANE}, 2, 2")
    E(f"v_add_u32 v2, v2, v3")
    E(f"v_mul_u32_u24 v2, 192, v2")
    E(f"v_and_b32 v4, 3, v{vLANE}")
    E(f"v_lshl_add_u32 v2, v4, 3, v2")
    E(f"v_bfe_u32 v4, v{vLANE}, 4, 1")
    E(f"v_lshl_add_u32 v2, v4, 5, v2")
    E(f"v_add_u32 v{vWA}, {XB}, v2")
    for i in range(48):
        E(f"v_mov_b32 v{vACC+i}, 0")
    E.stamp()
    E(f"s_cmp_ge_u32 s{sCOL}, 1024")
    E("s_cbranch_scc1 K1_NNN")
    E(f"s_cmp_eq_u32 s{sCOL}, 960")
    E("s_cbranch_scc1 K1_TTN")
    E("s_branch K1_TTT")
    def read_list(t, buf):
        L = [f"ds_read_b128 v[{vXF+4*buf}:{vXF+4*buf+3}], v{vXA+t}"]
        for b in range(3):
            for e in range(2):
                off = (16 * t + 4 * e) * 192 + 64 * b
                d = vWF + 12 * buf + 4 * b + 2 * e
                L.append(f"ds_read_b64_tr_b16 v[{d}:{d+1}], v{vWA} offset:{off}")
        return L
    snap = vm.snap()
    def bump(st):
        delta = SLOT if (st % NS) != 0 else -(NS - 1) * SLOT
        for r in list(range(vXA, vXA + 4)) + [vWA]:
            if delta > 0:
                E(f"v_add_u32 v{r}, {delta}, v{r}")
            else:
                E(f"v_subrev_u32 v{r}, {-delta}, v{r}")
    def main_loop(pat):
        E.nstamp = 3
        vm.restore(snap)
        vm.wait(("st", 0))
        E("s_barrier")
        E.stamp()
        for l in read_list(0, 0): E(l)
        pend = []
        for st in range(NST):
            for t in range(4):
                buf = t & 1
                last = (st == NST - 1 and t == 3)
                if t == 3 and not last:
                    bump(st + 1)
                nxt = [] if last else read_list((t + 1) & 3, buf ^ 1)
                for l in nxt: E(l)
                E(f"s_waitcnt lgkmcnt({len(nxt)})")
                for b in range(3):
                    xf = f"v[{vXF+4*buf}:{vXF+4*buf+3}]"
                    wf = f"v[{vWF+12*buf+4*b}:{vWF+12*buf+4*b+3}]"
                    acc = f"v[{vACC+16*b}:{vACC+16*b+15}]"
                    if pat[b] == 'T':
                        E(f"v_mfma_f32_32x32x16_bf16 {acc}, {wf}, {xf}, {acc}")
                    else:
                        E(f"v_mfma_f32_32x32x16_bf16 {acc}, {xf}, {wf}, {acc}")
                    if pend and b < 2:
                        dma(*pend.pop(0))
                if t == 1 and st + 1 < NST:
                    while pend: dma(*pend.pop(0))
                    vm.wait(("st", st + 1))
                    E("s_barrier")
                    E.stamp()
                    if st + PD < NST:
                        pend = [(st + PD, j) for j in range(7)]
    for pat in ("TTT", "TTN", "NNN"):
        E.label(f"K1_{pat}")
        main_loop(pat)
        E("s_branch K1_EPI")
    E.label("K1_EPI")
    vR, vH, vT = 2, 3, 4
    E(f"v_and_b32 v{vR}, 31, v{vLANE}")
    E(f"v_lshrrev_b32 v{vH}, 5, v{vLANE}")
    E("s_nop 15")
    E.stamp()
    P = vXF
    for b in range(3):
        acc = vACC + 16 * b
        tag = f"{b}"
        E(f"s_add_u32 s{sT0}, s{sCOL}, {32*b}")
        E(f"s_lshr_b32 s{sT2}, s{sT0}, 9")
        E(f"s_and_b32 s{sT0}, s{sT0}, 511")
        E(f"s_lshr_b32 s{sT0}, s{sT0}, 4")
        E(f"s_cmp_eq_u32 s{sT2}, 1")
        E(f"s_cbranch_scc1 K1_EK{tag}")
        E(f"s_cmp_eq_u32 s{sT2}, 2")
        E(f"s_cbranch_scc1 K1_EV{tag}")
        for i in range(16):
            E(f"v_mul_f32 v{acc+i}, {hex(f32bits(QSCALE))}, v{acc+i}")
        for i in range(8):
            E(f"v_cvt_pk_bf16_f32 v{P+i}, v{acc+2*i}, v{acc+2*i+1}")
        E(f"v_add_u32 v{vT}, s{sROW}, v{vR}")
        E(f"v_lshlrev_b32 v{vT}, 5, v{vT}")
        E(f"v_lshl_add_u32 v{vT}, v{vH}, 4, v{vT}")
        E(f"s_lshl_b32 s{sT0}, s{sT0}, 16")
        E(f"s_add_u32 s{sT0}, s{sT0}, {WS_Q}")
        E(f"buffer_store_dwordx4 v[{P}:{P+3}], v{vT}, s[{S_WS}:{S_WS+3}], s{sT0} offen")
        E(f"s_add_u32 s{sT0}, s{sT0}, 65536")
        E(f"buffer_store_dwordx4 v[{P+4}:{P+7}], v{vT}, s[{S_WS}:{S_WS+3}], s{sT0} offen")
        E(f"s_branch K1_EN{tag}")
        E.label(f"K1_EK{tag}")
        for i in range(8):
            E(f"v_cvt_pk_bf16_f32 v{P+i}, v{acc+2*i}, v{acc+2*i+1}")
        E(f"v_lshlrev_b32 v{vT}, 4, v{vR}")
        E(f"v_lshl_add_u32 v{vT}, v{vH}, 9, v{vT}")
        E(f"s_lshl_b32 s{sT0}, s{sT0}, 16")
        E(f"s_lshl_b32 s{sT2}, s{sROW}, 5")
        E(f"s_add_u32 s{sT0}, s{sT0}, s{sT2}")
        E(f"s_add_u32 s{sT0}, s{sT0}, {WS_K}")
        E(f"buffer_store_dwordx4 v[{P}:{P+3}], v{vT}, s[{S_WS}:{S_WS+3}], s{sT0} offen")
        E(f"s_add_u32 s{sT0}, s{sT0}, 65536")
        E(f"buffer_store_dwordx4 v[{P+4}:{P+7}], v{vT}, s[{S_WS}:{S_WS+3}], s{sT0} offen")
        E(f"s_branch K1_EN{tag}")
        E.label(f"K1_EV{tag}")
        for i in range(8):
            E(f"v_cvt_pk_bf16_f32 v{P+i}, v{acc+2*i}, v{acc+2*i+1}")
        E(f"v_and_b32 v{vT}, 15, v{vR}")
        E(f"v_lshlrev_b32 v{vT}, 4, v{vT}")
        E(f"v_lshl_add_u32 v{vT}, v{vH}, 8, v{vT}")
        E(f"v_lshrrev_b32 v{vT+1}, 4, v{vR}")
        E(f"v_lshl_add_u32 v{vT}, v{vT+1}, 16, v{vT}")
        E(f"s_lshl_b32 s{sT0}, s{sT0}, 16")
        E(f"s_lshl_b32 s{sT2}, s{sROW}, 5")
        E(f"s_add_u32 s{sT0}, s{sT0}, s{sT2}")
        E(f"s_add_u32 s{sT0}, s{sT0}, {WS_V}")
        E(f"buffer_store_dwordx4 v[{P}:{P+3}], v{vT}, s[{S_WS}:{S_WS+3}], s{sT0} offen")
        E(f"buffer_store_dwordx4 v[{P+4}:{P+7}], v{vT}, s[{S_WS}:{S_WS+3}], s{sT0} offen offset:512")
        E.label(f"K1_EN{tag}")
        E("s_nop 1")
    w = vGX + 8; t0 = vGX + 12
    for r in range(2):
        a = vGX + 4 * r
        g = vG + r
        for d in range(4):
            E(f"v_lshlrev_b32 v{t0}, 16, v{a+d}")
            E(f"v_lshlrev_b32 v{t0+1}, 16, v{w+d}")
            E(f"v_and_b32 v{t0+2}, 0xffff0000, v{a+d}")
            E(f"v_and_b32 v{t0+3}, 0xffff0000, v{w+d}")
            E(f"v_mul_f32 v{t0}, v{t0}, v{t0+1}")
            E(f"v_mul_f32 v{t0+2}, v{t0+2}, v{t0+3}")
            E(f"v_cvt_pk_bf16_f32 v{t0}, v{t0}, v{t0+2}")
            E(f"v_lshlrev_b32 v{t0+1}, 16, v{t0}")
            E(f"v_and_b32 v{t0+2}, 0xffff0000, v{t0}")
            if d == 0:
                E(f"v_add_f32 v{g}, v{t0+1}, v{t0+2}")
            else:
                E(f"v_add_f32 v{g}, v{g}, v{t0+1}")
                E(f"v_add_f32 v{g}, v{g}, v{t0+2}")
    for m in (1, 2, 4, 8, 16, 32):
        E(f"v_xor_b32 v{t0}, {m}, v{vLANE}")
        E(f"v_lshlrev_b32 v{t0}, 2, v{t0}")
        E(f"ds_bpermute_b32 v{t0+1}, v{t0}, v{vG}")
        E(f"ds_bpermute_b32 v{t0+2}, v{t0}, v{vG+1}")
        E("s_waitcnt lgkmcnt(0)")
        E(f"v_add_f32 v{vG}, v{vG}, v{t0+1}")
        E(f"v_add_f32 v{vG+1}, v{vG+1}, v{t0+2}")
    E(f"v_cmp_eq_u32 vcc, 1, v{vLANE}")
    E("s_nop 1")
    E(f"v_cndmask_b32 v{vG}, v{vG}, v{vG+1}, vcc")
    E(f"v_cvt_pk_bf16_f32 v{vG}, v{vG}, v{vG}")
    E(f"v_lshlrev_b32 v{vG}, 16, v{vG}")
    E(f"v_mul_f32 v{vG}, {hex(f32bits(-LOG2E))}, v{vG}")
    E(f"v_exp_f32 v{vG}, v{vG}")
    E("s_nop 0")
    E(f"v_add_f32 v{vG}, 1.0, v{vG}")
    E(f"v_rcp_f32 v{vG}, v{vG}")
    E("s_nop 0")
    E(f"v_cvt_pk_bf16_f32 v{vG}, v{vG}, v{vG}")
    E(f"v_lshlrev_b32 v{vG}, 16, v{vG}")
    E.nstamp = 12
    E.stamp()
    E.dump_stamps(S_WS, sW, 0)
    E(f"s_lshl_b32 s{sT0}, s2, 3")
    E(f"s_lshl_b32 s{sT1}, s{sW}, 1")
    E(f"s_add_u32 s{sT0}, s{sT0}, s{sT1}")
    E(f"s_lshl_b32 s{sT0}, s{sT0}, 2")
    E(f"s_add_u32 s{sT0}, s{sT0}, {WS_G}")
    E(f"v_lshlrev_b32 v2, 2, v{vLANE}")
    E(f"v_cmp_gt_u32 vcc, 2, v{vLANE}")
    E("s_and_saveexec_b64 s[64:65], vcc")
    E(f"buffer_store_dword v{vG}, v2, s[{S_WS}:{S_WS+3}], s{sT0} offen")
    E("s_mov_b64 exec, s[64:65]")
    E.label("K1_END")
    E("s_endpgm")
    return name, 128

def gen_k2_gwave(E, S_WS, sW, sH, sQB):
    vm = VM(E)
    S_X, S_W1, S_B1 = 24, 28, 32
    sT0, sT1, sCOL, sROW, sM0, sGW = 43, 44, 45, 46, 47, 48
    vLANE = 1
    vWD = 4
    vXD = 7
    vWA = 8
    vBIAS = 9
    vT = 12
    vXF = 16
    vWF = 32
    vB = 44
    vACC = 64
    vX = 112
    GBASE = 131072; GSZ = 6144; SL = 3072
    E.label("K2_G")
    E("s_load_dwordx2 s[4:5], s[0:1], 0")
    E("s_load_dwordx4 s[8:11], s[0:1], 32")
    E(f"s_sub_u32 s{sGW}, s{sW}, 8")
    E(f"s_lshl_b32 s{sT0}, s{sH}, 2")
    E(f"s_add_u32 s{sT0}, s{sT0}, s{sGW}")
    E(f"s_and_b32 s{sT1}, s{sT0}, 7")
    E(f"s_lshl_b32 s{sROW}, s{sQB}, 3")
    E(f"s_add_u32 s{sROW}, s{sROW}, s{sT1}")
    E(f"s_lshl_b32 s{sROW}, s{sROW}, 5")
    E(f"s_lshr_b32 s{sT1}, s{sT0}, 3")
    E(f"s_mul_i32 s{sCOL}, s{sT1}, 96")
    E(f"s_cmp_lt_u32 s{sT1}, 15")
    E("s_cbranch_scc1 K2_GGO")
    for i in range(4):
        E("s_barrier")
    E("s_endpgm")
    E.label("K2_GGO")
    E(f"s_mul_i32 s{sM0}, s{sGW}, {GSZ}")
    E(f"s_add_u32 s{sM0}, s{sM0}, {GBASE}")
    for t in range(3):
        E(f"v_add_u32 v2, {64*t}, v{vLANE}")
        E(f"v_mul_u32_u24 v3, 5462, v2")
        E(f"v_lshrrev_b32 v3, 16, v3")
        E(f"v_mul_u32_u24 v12, 12, v3")
        E(f"v_sub_u32 v12, v2, v12")
        E(f"v_mul_u32_u24 v3, 2752, v3")
        E(f"v_lshl_add_u32 v3, v12, 4, v3")
        E(f"s_lshl_b32 s{sT0}, s{sCOL}, 1")
        E(f"v_add_u32 v{vWD+t}, s{sT0}, v3")
    E(f"v_and_b32 v2, 31, v{vLANE}")
    E(f"v_add_u32 v2, s{sROW}, v2")
    E(f"v_lshlrev_b32 v2, 10, v2")
    E(f"v_lshrrev_b32 v3, 5, v{vLANE}")
    E(f"v_lshl_add_u32 v{vXD}, v3, 4, v2")
    E(f"v_lshrrev_b32 v2, 5, v{vLANE}")
    E(f"v_lshlrev_b32 v2, 3, v2")
    E(f"v_bfe_u32 v3, v{vLANE}, 2, 2")
    E(f"v_add_u32 v2, v2, v3")
    E(f"v_mul_u32_u24 v2, 192, v2")
    E(f"v_and_b32 v3, 3, v{vLANE}")
    E(f"v_lshl_add_u32 v2, v3, 3, v2")
    E(f"v_bfe_u32 v3, v{vLANE}, 4, 1")
    E(f"v_lshl_add_u32 v2, v3, 5, v2")
    E(f"v_add_u32 v{vWA}, s{sM0}, v2")
    E("s_waitcnt lgkmcnt(0)")
    make_srd(E, S_X, 4, 2048 * 1024)
    make_srd(E, S_W1, 8, 512 * 2752)
    make_srd(E, S_B1, 10, 1376 * 2)
    def dmaW(c):
        E(f"s_mov_b32 s{sT0}, {c*16*2752}")
        for t in range(3):
            E(f"s_add_u32 m0, s{sM0}, {(c%2)*SL + t*1024}")
            E("s_nop 0")
            E(f"buffer_load_dwordx4 v{vWD+t}, s[{S_W1}:{S_W1+3}], s{sT0} offen lds"); vm.issue(("w", c))
    def ldX(c):
        d = vXF + 4 * (c % 4)
        E(f"buffer_load_dwordx4 v[{d}:{d+3}], v{vXD}, s[{S_X}:{S_X+3}], 0 offen offset:{c*32}"); vm.issue(("x", c))
    E(f"v_lshlrev_b32 v2, 1, v{vLANE}")
    E(f"v_cmp_gt_u32 vcc, 32, v{vLANE}")
    E(f"v_mov_b32 v3, 0x7fff0000")
    E(f"s_lshl_b32 s{sT0}, s{sCOL}, 1")
    E(f"v_cndmask_b32 v2, v3, v2, vcc")
    for b in range(3):
        E(f"buffer_load_ushort v{vBIAS+b}, v2, s[{S_B1}:{S_B1+3}], s{sT0} offen offset:{64*b}"); vm.issue("b")
    ldX(0); dmaW(0); ldX(1); dmaW(1); ldX(2); ldX(3)
    for i in range(48):
        E(f"v_mov_b32 v{vACC+i}, 0")
    for c in range(32):
        if c in (0, 2, 6, 12):
            E("s_barrier")
        iw = max(i for i, t in enumerate(vm.ops) if t in (("w", c), ("x", c)))
        E(f"s_waitcnt vmcnt({len(vm.ops) - 1 - iw})")
        for b in range(3):
            for e in range(2):
                d = vWF + 4 * b + 2 * e
                E(f"ds_read_b64_tr_b16 v[{d}:{d+1}], v{vWA} offset:{(c%2)*SL + 4*e*192 + 64*b}")
        E("s_waitcnt lgkmcnt(0)")
        xf = vXF + 4 * (c % 4)
        for b in range(3):
            acc = f"v[{vACC+16*b}:{vACC+16*b+15}]"
            E(f"v_mfma_f32_32x32x16_bf16 {acc}, v[{vWF+4*b}:{vWF+4*b+3}], v[{xf}:{xf+3}], {acc}")
        if c + 2 < 32: dmaW(c + 2)
        if c + 4 < 32: ldX(c + 4)
    B = vB; X = vX
    E(f"v_cmp_gt_u32 vcc, 32, v{vLANE}")
    E(f"v_mov_b32 v{B}, 0x3f80")
    for i in range(1, 4):
        E(f"v_mov_b32 v{B+i}, 0")
    E(f"v_cndmask_b32 v{B}, 0, v{B}, vcc")
    for b in range(3):
        for i in range(1, 4):
            E(f"v_mov_b32 v{B+4+4*b+i}, 0")
        E(f"v_mov_b32 v{B+4+4*b}, v{vBIAS+b}")
    E("s_nop 1")
    for b in range(3):
        acc = f"v[{vACC+16*b}:{vACC+16*b+15}]"
        E(f"v_mfma_f32_32x32x16_bf16 {acc}, v[{B+4+4*b}:{B+7+4*b}], v[{B}:{B+3}], {acc}")
    E(f"v_and_b32 v2, 31, v{vLANE}")
    E(f"v_lshrrev_b32 v3, 5, v{vLANE}")
    E(f"v_add_u32 v{vT}, s{sROW}, v2")
    E(f"v_mul_u32_u24 v{vT}, 2752, v{vT}")
    E(f"v_lshl_add_u32 v{vT}, v3, 4, v{vT}")
    E(f"s_mov_b32 s60, {hex(f32bits(LOG2E))}")
    E(f"s_mov_b32 s61, s60")
    E(f"s_mov_b32 s62, 2.0")
    E(f"s_mov_b32 s63, 2.0")
    E("s_nop 15")
    for b in range(3):
        acc = vACC + 16 * b
        E(f"s_add_u32 s{sT0}, s{sCOL}, {32*b}")
        E(f"s_cmp_ge_u32 s{sT0}, 1376")
        E(f"s_cbranch_scc1 K2_END")
        E(f"s_lshl_b32 s{sT0}, s{sT0}, 1")
        E(f"s_add_u32 s{sT0}, s{sT0}, {WS_ACT}")
        for i in range(0, 16, 2):
            E(f"v_pk_mul_f32 v[{X+i}:{X+i+1}], v[{acc+i}:{acc+i+1}], s[60:61]")
        for i in range(16):
            E(f"v_min_f32 v{X+i}, 0x42200000, v{X+i}")
        for i in range(16):
            E(f"v_exp_f32 v{X+i}, v{X+i}")
        for i in range(0, 16, 2):
            E(f"v_pk_add_f32 v[{B+i}:{B+i+1}], v[{X+i}:{X+i+1}], s[62:63]")
        for i in range(0, 16, 2):
            E(f"v_pk_mul_f32 v[{X+i}:{X+i+1}], v[{X+i}:{X+i+1}], v[{B+i}:{B+i+1}]")
        for i in range(0, 16, 2):
            E(f"v_pk_add_f32 v[{B+i}:{B+i+1}], v[{X+i}:{X+i+1}], s[62:63]")
        for i in range(16):
            E(f"v_rcp_f32 v{B+i}, v{B+i}")
        for i in range(0, 16, 2):
            E(f"v_pk_mul_f32 v[{X+i}:{X+i+1}], v[{X+i}:{X+i+1}], v[{acc+i}:{acc+i+1}]")
        for i in range(0, 16, 2):
            E(f"v_pk_mul_f32 v[{X+i}:{X+i+1}], v[{X+i}:{X+i+1}], v[{B+i}:{B+i+1}]")
        for i in range(8):
            E(f"v_cvt_pk_bf16_f32 v{B+i}, v{X+2*i}, v{X+2*i+1}")
        E(f"buffer_store_dwordx4 v[{B}:{B+3}], v{vT}, s[{S_WS}:{S_WS+3}], s{sT0} offen")
        E(f"buffer_store_dwordx4 v[{B+4}:{B+7}], v{vT}, s[{S_WS}:{S_WS+3}], s{sT0} offen offset:32")
        E("s_nop 1")
    E("s_branch K2_END")

def gen_k2(E):
    name = "k2_attn_kernel"
    kernel_start(E, name)
    S_WS = 20
    sW, sH, sQB, sT0, sT1, sPASS, sIT = 40, 41, 42, 43, 44, 45, 46
    vLANE = 1
    vKA, vVA = 4, 5
    vDMA = 6
    vQ = 8
    vKF = 12
    vVF = 20
    vP = 36
    vS = 48
    vC = 80
    vO = 96
    vT = 112
    E("s_cmp_ge_u32 s2, 256")
    E("s_cbranch_scc1 K2_END")
    E("s_load_dwordx2 s[14:15], s[0:1], 80")
    E(f"v_and_b32 v{vLANE}, 63, v0")
    E("v_lshrrev_b32 v2, 6, v0")
    E("s_nop 0")
    E(f"v_readfirstlane_b32 s{sW}, v2")
    E(f"s_and_b32 s{sQB}, s2, 7")
    E(f"s_lshr_b32 s{sH}, s2, 3")
    E("s_load_dwordx2 s[4:5], s[0:1], 16")
    E("s_load_dwordx2 s[6:7], s[0:1], 48")
    E("s_waitcnt lgkmcnt(0)")
    E.stamp()
    make_srd(E, S_WS, 14, WS_SIZE)
    E(f"s_cmp_ge_u32 s{sW}, 8")
    E("s_cbranch_scc1 K2_G")
    make_srd(E, 24, 4, 512 * 1024)
    make_srd(E, 28, 6, 1376 * 1024)
    E(f"v_and_b32 v2, 31, v{vLANE}")
    E(f"v_lshrrev_b32 v3, 5, v{vLANE}")
    E(f"v_lshlrev_b32 v2, 5, v2")
    E(f"v_lshl_add_u32 v2, v3, 4, v2")
    E(f"s_lshl_b32 s{sT0}, s{sH}, 11")
    E(f"s_lshl_b32 s{sT1}, s{sQB}, 8")
    E(f"s_add_u32 s{sT0}, s{sT0}, s{sT1}")
    E(f"s_lshl_b32 s{sT1}, s{sW}, 5")
    E(f"s_add_u32 s{sT0}, s{sT0}, s{sT1}")
    E(f"s_lshl_b32 s{sT0}, s{sT0}, 5")
    E(f"s_add_u32 s{sT0}, s{sT0}, {WS_Q}")
    E(f"buffer_load_dwordx4 v[{vQ}:{vQ+3}], v2, s[{S_WS}:{S_WS+3}], s{sT0} offen")
    E(f"v_lshlrev_b32 v{vDMA}, 4, v{vLANE}")
    E(f"s_lshl_b32 s{sT1}, s{sW}, 10")
    E(f"s_lshl_b32 s{sT0}, s{sH}, 16")
    E(f"s_add_u32 s{sT0}, s{sT0}, s{sT1}")
    E(f"s_mov_b32 s48, s{sT1}")
    E(f"s_add_u32 s49, s{sT0}, {WS_K}")
    def dma_chunk():
        E(f"s_mov_b32 m0, s48")
        E(f"s_add_u32 s50, s49, {WS_V - WS_K}")
        E(f"buffer_load_dwordx4 v{vDMA}, s[{S_WS}:{S_WS+3}], s49 offen lds")
        E(f"s_add_u32 m0, s48, 65536")
        E(f"s_add_u32 s48, s48, 8192")
        E(f"buffer_load_dwordx4 v{vDMA}, s[{S_WS}:{S_WS+3}], s50 offen lds")
        E(f"s_add_u32 s49, s49, 8192")
    dma_chunk()
    E(f"v_and_b32 v2, 31, v{vLANE}")
    E(f"v_cmp_eq_u32 vcc, 16, v2")
    E(f"v_mov_b32 v3, 0x3f803f80")
    E("s_nop 0")
    E(f"v_cndmask_b32 v3, 0, v3, vcc")
    for i in range(16):
        E(f"v_mov_b32 v{vVF+i}, v3")
    E("s_mov_b32 s52, 0x0000ffff")
    E("s_mov_b32 s53, 0x0000ffff")
    E(f"s_mov_b32 s{sPASS}, 0")
    E.stamp()
    E("s_waitcnt vmcnt(0)")
    E("s_barrier")
    E.stamp()
    E(f"v_lshlrev_b32 v{vKA}, 4, v{vLANE}")
    E(f"ds_read_b128 v[{vKF}:{vKF+3}], v{vKA}")
    E("s_waitcnt lgkmcnt(0)")
    E(f"v_mfma_f32_32x32x16_bf16 v[{vS}:{vS+15}], v[{vKF}:{vKF+3}], v[{vQ}:{vQ+3}], 0")
    E("s_nop 15")
    def rowmax16(src, dst):
        E(f"v_max3_f32 v{dst}, v{src}, v{src+1}, v{src+2}")
        for i in range(3, 15, 2):
            E(f"v_max3_f32 v{dst}, v{dst}, v{src+i}, v{src+i+1}")
        E(f"v_max_f32 v{dst}, v{dst}, v{src+15}")
    def cross_half_max(reg):
        E(f"v_mov_b32 v{vT+1}, v{reg}")
        E(f"v_mov_b32 v{vT+2}, v{reg}")
        E("s_nop 1")
        E(f"v_permlane32_swap_b32 v{vT+1}, v{vT+2}")
        E("s_nop 1")
        E(f"v_max_f32 v{reg}, v{vT+1}, v{vT+2}")
    rowmax16(vS, vT)
    cross_half_max(vT)
    E.label("K2_RUN")
    for i in range(16):
        E(f"v_sub_f32 v{vC+i}, 0, v{vT}")
    for i in range(16):
        E(f"v_mov_b32 v{vO+i}, 0")
    E(f"v_lshlrev_b32 v{vKA}, 4, v{vLANE}")
    E(f"v_and_b32 v2, 31, v{vLANE}")
    E(f"v_lshrrev_b32 v3, 5, v{vLANE}")
    E(f"v_lshlrev_b32 v2, 4, v2")
    E(f"v_lshl_add_u32 v2, v3, 8, v2")
    E(f"v_add_u32 v{vVA}, 65536, v2")
    X_NOLDS = int(os.environ.get("X_NOLDS", "0"))
    X_NOEXEC = int(os.environ.get("X_NOEXEC", "0"))
    def rdK(buf, tile_off):
        if X_NOLDS: return
        E(f"ds_read_b128 v[{vKF+4*buf}:{vKF+4*buf+3}], v{vKA} offset:{tile_off*1024}")
    def rdV(buf, tile_off):
        if X_NOLDS: return
        if not X_NOEXEC: E("s_mov_b64 exec, s[52:53]")
        E(f"ds_read_b128 v[{vVF+8*buf}:{vVF+8*buf+3}], v{vVA} offset:{tile_off*1024}")
        E(f"ds_read_b128 v[{vVF+8*buf+4}:{vVF+8*buf+7}], v{vVA} offset:{tile_off*1024+512}")
        if not X_NOEXEC: E("s_mov_b64 exec, -1")
    def qk(sbuf, kbuf):
        E(f"v_mfma_f32_32x32x16_bf16 v[{vS+16*sbuf}:{vS+16*sbuf+15}], v[{vKF+4*kbuf}:{vKF+4*kbuf+3}], v[{vQ}:{vQ+3}], v[{vC}:{vC+15}]")
    rdK(0, 0); rdK(1, 1); rdV(0, 0)
    E("s_waitcnt lgkmcnt(3)")
    qk(0, 0)
    E(f"s_mov_b32 s{sIT}, 0")
    E.label("K2_LOOP")
    E(f"s_cmp_lg_u32 s{sPASS}, 0")
    E("s_cbranch_scc1 K2_NODMA")
    E(f"s_cmp_ge_u32 s{sIT}, 7")
    E("s_cbranch_scc1 K2_NODMA")
    dma_chunk()
    E.label("K2_NODMA")
    PF = int(os.environ.get("PF", "1"))
    if PF:
        E(f"s_cmp_lg_u32 s{sIT}, 16")
        E("s_cbranch_scc1 K2_NOPF")
        E(f"s_lshl_b32 s58, s{sH}, 3")
        E(f"s_add_u32 s58, s58, s{sW}")
        E(f"s_lshl_b32 s59, s58, 11")
        for j in range(2):
            E(f"buffer_load_dwordx4 v[124:127], v{vDMA}, s[24:27], s59 offen offset:{1024*j}")
        E(f"s_mul_i32 s59, s58, 5504")
        for j in range(3):
            E(f"buffer_load_dwordx4 v[124:127], v{vDMA}, s[28:31], s59 offen offset:{1024*j}")
        E(f"s_add_u32 s59, s59, 3072")
        for j in range(3):
            E(f"buffer_load_dwordx4 v[124:127], v{vDMA}, s[28:31], s59 offen offset:{1024*j}")
        E.label("K2_NOPF")
    for half in range(2):
        X = half; Y = half ^ 1
        E("s_waitcnt lgkmcnt(2)")
        qk(Y, Y)
        rdK(X, half + 2)
        s = vS + 16 * X
        for i in range(8):
            E(f"v_exp_f32 v{s+i}, v{s+i}")
        for i in range(4):
            E(f"v_cvt_pk_bf16_f32 v{vP+i}, v{s+2*i}, v{s+2*i+1}")
        E("s_waitcnt lgkmcnt(1)")
        for i in range(8, 10):
            E(f"v_exp_f32 v{s+i}, v{s+i}")
        E(f"v_mfma_f32_32x32x16_bf16 v[{vO}:{vO+15}], v[{vVF+8*X}:{vVF+8*X+3}], v[{vP}:{vP+3}], v[{vO}:{vO+15}]")
        for i in range(10, 16):
            E(f"v_exp_f32 v{s+i}, v{s+i}")
        for i in range(4, 8):
            E(f"v_cvt_pk_bf16_f32 v{vP+i}, v{s+2*i}, v{s+2*i+1}")
        rdV(Y, half + 1)
        E(f"v_mfma_f32_32x32x16_bf16 v[{vO}:{vO+15}], v[{vVF+8*X+4}:{vVF+8*X+7}], v[{vP+4}:{vP+7}], v[{vO}:{vO+15}]")
    E(f"v_add_u32 v{vKA}, 2048, v{vKA}")
    E(f"v_add_u32 v{vVA}, 2048, v{vVA}")
    E(f"s_add_u32 s{sIT}, s{sIT}, 1")
    E(f"s_cmp_lg_u32 s{sPASS}, 0")
    E("s_cbranch_scc1 K2_NOBAR")
    E(f"s_cmp_eq_u32 s{sIT}, 3")
    E("s_cbranch_scc0 K2_B2")
    E.stamp()
    E("s_waitcnt vmcnt(4)")
    E("s_barrier")
    E.stamp()
    E("s_branch K2_NOBAR")
    E.label("K2_B2")
    E(f"s_cmp_eq_u32 s{sIT}, 7")
    E("s_cbranch_scc0 K2_B3")
    E("s_waitcnt vmcnt(8)")
    E("s_barrier")
    E("s_branch K2_NOBAR")
    E.label("K2_B3")
    E(f"s_cmp_eq_u32 s{sIT}, 15")
    E("s_cbranch_scc0 K2_NOBAR")
    E("s_waitcnt vmcnt(0)")
    E("s_barrier")
    E.label("K2_NOBAR")
    E(f"s_cmp_lt_u32 s{sIT}, 32")
    E("s_cbranch_scc1 K2_LOOP")
    E("s_waitcnt lgkmcnt(0)")
    E("s_nop 15")
    E.stamp()
    E(f"v_mov_b32 v{vT+1}, v{vO+8}")
    E(f"v_mov_b32 v{vT+2}, v{vO+8}")
    E("s_nop 1")
    E(f"v_permlane32_swap_b32 v{vT+1}, v{vT+2}")
    E(f"s_cmp_lg_u32 s{sPASS}, 0")
    E("s_cbranch_scc1 K2_FIN")
    E(f"v_max3_f32 v{vT+3}, |v{vO}|, |v{vO+1}|, |v{vO+2}|")
    E(f"v_max3_f32 v{vT+3}, v{vT+3}, |v{vO+3}|, |v{vO+4}|")
    E(f"v_max3_f32 v{vT+3}, v{vT+3}, |v{vO+5}|, |v{vO+6}|")
    E(f"v_max_f32 v{vT+3}, v{vT+3}, |v{vO+7}|")
    E(f"s_mov_b32 s54, 0x5d800000")
    E(f"s_mov_b32 s55, 0x7f000000")
    E(f"v_cmp_nlt_f32 vcc, v{vT+1}, s54")
    E(f"v_cmp_nlt_f32 s[56:57], v{vT+3}, s55")
    E("s_nop 1")
    E("s_or_b64 vcc, vcc, s[56:57]")
    E("s_cbranch_vccz K2_FIN")
    E(f"v_lshlrev_b32 v{vKA}, 4, v{vLANE}")
    E(f"v_mov_b32 v{vT}, 0xff800000")
    E(f"s_mov_b32 s{sIT}, 0")
    E.label("K2_MAXLOOP")
    E(f"ds_read_b128 v[{vKF}:{vKF+3}], v{vKA}")
    E("s_waitcnt lgkmcnt(0)")
    E(f"v_mfma_f32_32x32x16_bf16 v[{vS}:{vS+15}], v[{vKF}:{vKF+3}], v[{vQ}:{vQ+3}], 0")
    E("s_nop 15")
    for i in range(0, 16, 2):
        E(f"v_max3_f32 v{vT}, v{vT}, v{vS+i}, v{vS+i+1}")
    E(f"v_add_u32 v{vKA}, 1024, v{vKA}")
    E(f"s_add_u32 s{sIT}, s{sIT}, 1")
    E(f"s_cmp_lt_u32 s{sIT}, 64")
    E("s_cbranch_scc1 K2_MAXLOOP")
    cross_half_max(vT)
    E(f"s_mov_b32 s{sPASS}, 1")
    E("s_branch K2_RUN")
    E.label("K2_FIN")
    E(f"v_rcp_f32 v{vT+1}, v{vT+1}")
    E("s_nop 0")
    for i in range(8):
        E(f"v_mul_f32 v{vO+i}, v{vO+i}, v{vT+1}")
    for i in range(4):
        E(f"v_cvt_pk_bf16_f32 v{vP+i}, v{vO+2*i}, v{vO+2*i+1}")
    E(f"v_and_b32 v2, 31, v{vLANE}")
    E(f"v_lshrrev_b32 v3, 5, v{vLANE}")
    E(f"v_lshlrev_b32 v2, 10, v2")
    E(f"v_lshl_add_u32 v2, v3, 4, v2")
    E(f"s_lshl_b32 s{sT0}, s{sQB}, 8")
    E(f"s_lshl_b32 s{sT1}, s{sW}, 5")
    E(f"s_add_u32 s{sT0}, s{sT0}, s{sT1}")
    E(f"s_lshl_b32 s{sT0}, s{sT0}, 10")
    E(f"s_lshl_b32 s{sT1}, s{sH}, 5")
    E(f"s_add_u32 s{sT0}, s{sT0}, s{sT1}")
    E(f"s_add_u32 s{sT0}, s{sT0}, {WS_O}")
    E(f"buffer_store_dwordx4 v[{vP}:{vP+3}], v2, s[{S_WS}:{S_WS+3}], s{sT0} offen")
    E.stamp()
    E.dump_stamps(S_WS, sW, 1)
    E.label("K2_END")
    E("s_endpgm")
    gen_k2_gwave(E, S_WS, sW, sH, sQB)
    return name, 128

def gen_k3(E):
    name = "k3_out_kernel"
    kernel_start(E, name)
    vm = VM(E)
    NS = 9; SLOT = 16384; AB = 8192
    S_WS, S_WO, S_W2, S_OUT = 20, 24, 28, 32
    sW, sMT, sNT, sT0, sT1, sAM0, sBM0, sROW, sKH, sWQ = 40, 41, 42, 43, 44, 45, 46, 47, 48, 49
    vLANE = 1
    vAD1 = 8
    vAD2 = 9
    vBD = 10
    vAA = 12
    vBA = 14
    vG = 15
    vAF = 24
    vBF = 32
    vACC1 = 48
    vACC2 = 64
    vT = 80
    E("s_cmp_ge_u32 s2, 256")
    E("s_cbranch_scc1 K3_END")
    E("s_load_dwordx2 s[4:5], s[0:1], 16")
    E("s_load_dwordx2 s[6:7], s[0:1], 48")
    E("s_load_dwordx2 s[8:9], s[0:1], 64")
    E("s_load_dwordx2 s[14:15], s[0:1], 80")
    E(f"v_and_b32 v{vLANE}, 63, v0")
    E("v_lshrrev_b32 v2, 6, v0")
    E("s_nop 0")
    E(f"v_readfirstlane_b32 s{sW}, v2")
    E(f"s_and_b32 s{sT0}, s2, 7")
    E(f"s_lshr_b32 s{sT1}, s2, 3")
    E(f"s_lshl_b32 s{sMT}, s{sT0}, 2")
    E(f"s_and_b32 s{sT0}, s{sT1}, 3")
    E(f"s_add_u32 s{sMT}, s{sMT}, s{sT0}")
    E(f"s_lshr_b32 s{sNT}, s{sT1}, 2")
    E(f"s_lshr_b32 s{sKH}, s{sW}, 2")
    E(f"s_and_b32 s{sWQ}, s{sW}, 3")
    E(f"s_lshl_b32 s{sT0}, s{sW}, 3")
    E(f"v_lshrrev_b32 v2, 3, v{vLANE}")
    E(f"v_add_u32 v2, s{sT0}, v2")
    E(f"v_lshrrev_b32 v3, 1, v2")
    E(f"v_and_b32 v3, 7, v3")
    E(f"v_and_b32 v4, 7, v{vLANE}")
    E(f"v_xor_b32 v3, v3, v4")
    E(f"s_lshl_b32 s{sT0}, s{sMT}, 6")
    E(f"v_add_u32 v5, s{sT0}, v2")
    E(f"v_lshlrev_b32 v6, 10, v5")
    E(f"v_lshl_add_u32 v6, v3, 4, v6")
    E(f"v_add_u32 v{vAD1}, {WS_O}, v6")
    E(f"v_mul_u32_u24 v6, 2752, v5")
    E(f"v_lshl_add_u32 v6, v3, 4, v6")
    E(f"v_add_u32 v{vAD2}, {WS_ACT}, v6")
    E(f"v_lshlrev_b32 v3, 1, v2")
    E(f"v_and_b32 v3, 4, v3")
    E(f"v_xor_b32 v3, v3, v4")
    E(f"v_lshlrev_b32 v2, 10, v2")
    E(f"v_lshl_add_u32 v2, v3, 4, v2")
    E(f"s_lshl_b32 s{sT0}, s{sNT}, 7")
    E(f"v_add_u32 v{vBD}, s{sT0}, v2")
    E(f"s_lshl_b32 s{sAM0}, s{sW}, 10")
    E(f"s_add_u32 s{sBM0}, s{sAM0}, {AB}")
    E("s_waitcnt lgkmcnt(0)")
    E.stamp()
    make_srd(E, S_WS, 14, WS_SIZE)
    make_srd(E, S_WO, 4, 512 * 1024)
    make_srd(E, S_W2, 6, 1376 * 1024)
    make_srd(E, S_OUT, 8, 2048 * 1024)
    NST = 30
    def issue_stage(st):
        slot = st % NS
        if st < 8:
            ad, bs, ka = vAD1, S_WO, st
        else:
            ad, bs, ka = vAD2, S_W2, st - 8
        E(f"s_mov_b32 s{sT0}, {ka*128}")
        E(f"s_add_u32 m0, s{sAM0}, {slot*SLOT}")
        E("s_nop 0")
        E(f"buffer_load_dwordx4 v{ad}, s[{S_WS}:{S_WS+3}], s{sT0} offen lds"); vm.issue(st)
        E(f"s_mov_b32 s{sT0}, {ka*65536}")
        E(f"s_add_u32 m0, s{sBM0}, {slot*SLOT}")
        E("s_nop 0")
        E(f"buffer_load_dwordx4 v{vBD}, s[{bs}:{bs+3}], s{sT0} offen lds"); vm.issue(st)
    PD = NS - 1
    for st in range(PD):
        issue_stage(st)
    E(f"s_and_b32 s{sT0}, s{sWQ}, 1")
    E(f"s_lshl_b32 s{sT0}, s{sT0}, 5")
    E(f"s_lshl_b32 s{sT1}, s{sMT}, 6")
    E(f"s_add_u32 s{sROW}, s{sT0}, s{sT1}")
    E(f"s_lshl_b32 s{sT0}, s{sROW}, 2")
    E(f"s_add_u32 s{sT0}, s{sT0}, {WS_G}")
    E(f"v_and_b32 v2, 31, v{vLANE}")
    E(f"v_lshlrev_b32 v2, 2, v2")
    E(f"buffer_load_dword v{vG}, v2, s[{S_WS}:{S_WS+3}], s{sT0} offen"); vm.issue("g")
    E.stamp()
    E(f"s_and_b32 s{sT0}, s{sWQ}, 1")
    E(f"s_lshl_b32 s{sT0}, s{sT0}, 5")
    E(f"v_and_b32 v2, 31, v{vLANE}")
    E(f"v_add_u32 v2, s{sT0}, v2")
    E(f"v_lshrrev_b32 v3, 1, v2")
    E(f"v_and_b32 v3, 7, v3")
    E(f"v_lshrrev_b32 v4, 5, v{vLANE}")
    E(f"v_lshlrev_b32 v2, 7, v2")
    E(f"s_lshl_b32 s{sT0}, s{sKH}, 2")
    E(f"v_add_u32 v4, s{sT0}, v4")
    for t in range(2):
        E(f"v_add_u32 v5, {2*t}, v4")
        E(f"v_xor_b32 v5, v5, v3")
        E(f"v_lshl_add_u32 v{vAA+t}, v5, 4, v2")
    E(f"v_lshrrev_b32 v2, 5, v{vLANE}")
    E(f"v_lshlrev_b32 v2, 2, v2")
    E(f"v_bfe_u32 v3, v{vLANE}, 2, 2")
    E(f"v_add_u32 v2, v2, v3")
    E(f"s_lshl_b32 s{sT0}, s{sKH}, 5")
    E(f"v_add_u32 v2, s{sT0}, v2")
    E(f"v_lshlrev_b32 v2, 7, v2")
    E(f"v_and_b32 v4, 1, v{vLANE}")
    E(f"v_lshl_add_u32 v2, v4, 3, v2")
    E(f"v_add_u32 v2, {AB}, v2")
    E(f"v_bfe_u32 v4, v{vLANE}, 4, 1")
    E(f"v_lshlrev_b32 v4, 1, v4")
    E(f"v_bfe_u32 v5, v{vLANE}, 1, 1")
    E(f"v_add_u32 v4, v4, v5")
    E(f"s_lshr_b32 s{sT0}, s{sWQ}, 1")
    E(f"s_lshl_b32 s{sT0}, s{sT0}, 2")
    E(f"v_add_u32 v4, s{sT0}, v4")
    E(f"v_lshlrev_b32 v3, 1, v3")
    E(f"v_and_b32 v3, 4, v3")
    E(f"v_xor_b32 v4, v4, v3")
    E(f"v_lshl_add_u32 v{vBA}, v4, 4, v2")
    for i in range(32):
        E(f"v_mov_b32 v{vACC1+i}, 0")
    def frag_reads(t, buf):
        E(f"ds_read_b128 v[{vAF+4*buf}:{vAF+4*buf+3}], v{vAA+t}")
        for e in range(2):
            off = (16 * t + 8 * e) * 128
            d = vBF + 4 * buf + 2 * e
            E(f"ds_read_b64_tr_b16 v[{d}:{d+1}], v{vBA} offset:{off}")
    def bump(st):
        delta = SLOT if (st % NS) != 0 else -(NS - 1) * SLOT
        for r in [vAA, vAA + 1, vBA]:
            if delta > 0:
                E(f"v_add_u32 v{r}, {delta}, v{r}")
            else:
                E(f"v_subrev_u32 v{r}, {-delta}, v{r}")
    vm.wait(0)
    E("s_barrier")
    E.stamp()
    frag_reads(0, 0)
    for st in range(NST):
        acc = vACC1 if st < 8 else vACC2
        lastst = (st == NST - 1)
        if lastst:
            E(f"s_cmp_lg_u32 s{sKH}, 0")
            E("s_cbranch_scc1 K3_SKIPLAST")
        frag_reads(1, 1)
        E("s_waitcnt lgkmcnt(3)")
        E(f"v_mfma_f32_32x32x16_bf16 v[{acc}:{acc+15}], v[{vBF}:{vBF+3}], v[{vAF}:{vAF+3}], v[{acc}:{acc+15}]")
        if not lastst:
            vm.wait(st + 1)
            E("s_barrier")
            if st + 1 in (1, 2, 4, 8, 12, 16, 20, 24, 29): E.stamp()
            if st + PD < NST:
                issue_stage(st + PD)
            bump(st + 1)
            frag_reads(0, 0)
            E("s_waitcnt lgkmcnt(3)")
        else:
            E("s_waitcnt lgkmcnt(0)")
        E(f"v_mfma_f32_32x32x16_bf16 v[{acc}:{acc+15}], v[{vBF+4}:{vBF+7}], v[{vAF+4}:{vAF+7}], v[{acc}:{acc+15}]")
        if lastst:
            E.label("K3_SKIPLAST")
            E("s_waitcnt lgkmcnt(0)")
    E("s_nop 15")
    E("s_barrier")
    E(f"v_lshlrev_b32 v2, 4, v{vLANE}")
    E(f"s_lshl_b32 s{sT0}, s{sWQ}, 13")
    E(f"v_add_u32 v2, s{sT0}, v2")
    E(f"s_cmp_eq_u32 s{sKH}, 0")
    E("s_cbranch_scc1 K3_RD")
    for i in range(8):
        E(f"ds_write_b128 v2, v[{vACC1+4*i}:{vACC1+4*i+3}] offset:{1024*i}")
    E("s_waitcnt lgkmcnt(0)")
    E("s_barrier")
    E("s_branch K3_END")
    E.label("K3_RD")
    E("s_barrier")
    for i in range(8):
        E(f"ds_read_b128 v[{vT+16+4*i}:{vT+16+4*i+3}], v2 offset:{1024*i}")
    E("s_waitcnt lgkmcnt(0)")
    for i in range(0, 32, 2):
        E(f"v_pk_add_f32 v[{vACC1+i}:{vACC1+i+1}], v[{vACC1+i}:{vACC1+i+1}], v[{vT+16+i}:{vT+16+i+1}]")
    E.stamp()
    E(f"v_sub_f32 v{vT}, 1.0, v{vG}")
    E(f"v_cvt_pk_bf16_f32 v{vT}, v{vT}, v{vT}")
    E(f"v_lshlrev_b32 v{vT}, 16, v{vT}")
    def rnd_pair(r):
        E(f"v_cvt_pk_bf16_f32 v{vT+1}, v{r}, v{r+1}")
        E(f"v_lshlrev_b32 v{r}, 16, v{vT+1}")
        E(f"v_and_b32 v{r+1}, 0xffff0000, v{vT+1}")
    for i in range(0, 16, 2):
        rnd_pair(vACC1 + i); rnd_pair(vACC2 + i)
        E(f"v_mul_f32 v{vACC1+i}, v{vG}, v{vACC1+i}")
        E(f"v_mul_f32 v{vACC1+i+1}, v{vG}, v{vACC1+i+1}")
        E(f"v_mul_f32 v{vACC2+i}, v{vT}, v{vACC2+i}")
        E(f"v_mul_f32 v{vACC2+i+1}, v{vT}, v{vACC2+i+1}")
        rnd_pair(vACC1 + i); rnd_pair(vACC2 + i)
        E(f"v_add_f32 v{vACC1+i}, v{vACC1+i}, v{vACC2+i}")
        E(f"v_add_f32 v{vACC1+i+1}, v{vACC1+i+1}, v{vACC2+i+1}")
        E(f"v_cvt_pk_bf16_f32 v{vT+4+i//2}, v{vACC1+i}, v{vACC1+i+1}")
    E(f"v_and_b32 v2, 31, v{vLANE}")
    E(f"v_lshrrev_b32 v3, 5, v{vLANE}")
    E(f"v_lshlrev_b32 v2, 10, v2")
    E(f"v_lshl_add_u32 v2, v3, 3, v2")
    E(f"s_lshl_b32 s{sT0}, s{sROW}, 10")
    E(f"s_lshl_b32 s{sT1}, s{sNT}, 7")
    E(f"s_add_u32 s{sT0}, s{sT0}, s{sT1}")
    E(f"s_lshr_b32 s{sT1}, s{sWQ}, 1")
    E(f"s_lshl_b32 s{sT1}, s{sT1}, 6")
    E(f"s_add_u32 s{sT0}, s{sT0}, s{sT1}")
    for q in range(4):
        E(f"buffer_store_dwordx2 v[{vT+4+2*q}:{vT+5+2*q}], v2, s[{S_OUT}:{S_OUT+3}], s{sT0} offen offset:{16*q}")
    E.stamp()
    E.dump_stamps(S_WS, sW, 2)
    E.label("K3_END")
    E("s_endpgm")
    return name, 128

def main():
    hdr = open(f"cdna_kernels/{NAME}.s.ref").read().split("\n")
    head = [l for l in hdr if l.startswith(";") and "@launch" not in l]
    E = Asm()
    k1, v1 = gen_k1(E)
    k2, v2 = gen_k2(E)
    k3, v3 = gen_k3(E)
    out = "\n".join(head) + "\n"
    out += f"; @launch kernel={k1} grid=(256,1,1) block=(256,1,1) lds=143360\n"
    out += f"; @launch kernel={k2} grid=(256,1,1) block=(768,1,1) lds=155648\n"
    out += f"; @launch kernel={k3} grid=(256,1,1) block=(512,1,1) lds={9*16384}\n"
    out += '.amdgcn_target "amdgcn-amd-amdhsa--gfx950"\n.text\n'
    out += E.text()
    out += '.section .rodata,"a"\n'
    out += kernel_desc(k1, v1) + kernel_desc(k2, v2) + kernel_desc(k3, v3)
    open(OUT, "w").write(out)
    print("wrote", OUT, len(out))

if __name__ == "__main__":
    main()
```

```python
import sys, math

NAME = "gated_mix__softmax_full_mha__dense_activation_mish__prompt"
OUT = f"cdna_kernels/{NAME}.s"
import os as _os
if int(_os.environ.get("DIAG","0")): OUT = "diag.s"

WS_Q   = 0
WS_K   = 2 << 20
WS_V   = 4 << 20
WS_O   = 6 << 20
WS_ACT = 8 << 20
WS_G   = 14 << 20
WS_B   = 15 << 20
WS_SIZE = 18 << 20

LOG2E = 1.4426950408889634
QSCALE = 0.25 * LOG2E

def f32bits(x):
    import struct
    return struct.unpack("<I", struct.pack("<f", x))[0]

import os
DIAG = int(os.environ.get("DIAG", "0"))
WS_DBG = 17 << 20
class Asm:
    def __init__(self):
        self.lines = []
        self.nstamp = 0
    def stamp(self):
        if not DIAG: return
        r = 70 + 2 * self.nstamp
        assert r < 100
        self(f"s_memtime s[{r}:{r+1}]")
        self("s_waitcnt lgkmcnt(0)")
        self.nstamp += 1
    def rstamp(self):
        if not DIAG: return
        r = 70 + 2 * self.nstamp
        self(f"s_memrealtime s[{r}:{r+1}]")
        self("s_waitcnt lgkmcnt(0)")
        self.nstamp += 1
    def dump_stamps(self, srd, swave, kidx):
        if not DIAG: return
        self(f"s_lshl_b32 s68, s2, 4")
        self(f"s_add_u32 s68, s68, s{swave}")
        self(f"s_lshl_b32 s68, s68, 6")
        self(f"s_add_u32 s68, s68, {WS_DBG + kidx * 0x40000}")
        self(f"v_mov_b32 v2, 0")
        for i in range(self.nstamp):
            self(f"v_mov_b32 v3, s{70+2*i}")
            self(f"buffer_store_dword v3, v2, s[{srd}:{srd+3}], s68 offen offset:{4*i}")
            self("s_nop 1")
        self.nstamp = 0
    def __call__(self, s):
        self.lines.append("    " + s)
    def label(self, s):
        self.lines.append(s + ":")
    def raw(self, s):
        self.lines.append(s)
    def comment(self, s):
        self.lines.append("    ; " + s)
    def text(self):
        return "\n".join(self.lines) + "\n"

class VM:
    def __init__(self, E):
        self.E = E; self.ops = []
    def issue(self, tag):
        self.ops.append(tag)
    def wait(self, tag):
        idx = max(i for i, t in enumerate(self.ops) if t == tag)
        n = len(self.ops) - 1 - idx
        assert n <= 63
        self.E(f"s_waitcnt vmcnt({n})")
    def snap(self):
        return list(self.ops)
    def restore(self, s):
        self.ops = list(s)

def vr(a, n=1):
    return f"v{a}" if n == 1 else f"v[{a}:{a+n-1}]"
def sr(a, n=1):
    return f"s{a}" if n == 1 else f"s[{a}:{a+n-1}]"

def kernel_start(E, name):
    E.raw(f".globl {name}")
    E.raw(".p2align 8")
    E.raw(f".type {name},@function")
    E.label(name)

def kernel_desc(name, vgpr, sgpr=102):
    acc = (vgpr + 3) // 4 * 4
    return f""".p2align 6
.amdhsa_kernel {name}
  .amdhsa_next_free_vgpr {vgpr}
  .amdhsa_next_free_sgpr {sgpr}
  .amdhsa_accum_offset {acc}
  .amdhsa_group_segment_fixed_size 0
  .amdhsa_kernarg_size 88
  .amdhsa_user_sgpr_count 2
  .amdhsa_user_sgpr_kernarg_segment_ptr 1
  .amdhsa_system_sgpr_workgroup_id_x 1
.end_amdhsa_kernel
"""

def make_srd(E, d, base, size):
    E(f"s_mov_b32 s{d}, s{base}")
    E(f"s_and_b32 s{d+1}, s{base+1}, 0xffff")
    E(f"s_mov_b32 s{d+2}, {size}")
    E(f"s_mov_b32 s{d+3}, 0x00020000")

def gen_k1(E):
    name = "k1_proj_kernel"
    kernel_start(E, name)
    vm = VM(E)
    NS = 5; PD = int(os.environ.get("K1PD", "4"))
    SLOT = 28672; XB = 16384
    NST = 8
    S_X, S_W, S_WS, S_GW = 20, 24, 28, 36
    sW, sMT, sNT, sT0, sT1, sT2 = 40, 41, 42, 45, 46, 47
    sXM0, sWM0, sCOL, sROW, sROT = 48, 49, 51, 53, 55
    vLANE = 1
    vXD = 8
    vWD = 12
    vXA = 16
    vWA = 20
    vG = 22
    vGX = 24
    vXF = 48
    vWF = 56
    vACC = 80
    E("s_cmp_ge_u32 s2, 256")
    E("s_cbranch_scc1 K1_END")
    E("s_load_dwordx4 s[4:7], s[0:1], 0")
    E("s_load_dwordx2 s[12:13], s[0:1], 56")
    E("s_load_dwordx2 s[14:15], s[0:1], 80")
    E(f"v_and_b32 v{vLANE}, 63, v0")
    E("v_lshrrev_b32 v2, 6, v0")
    E("s_nop 0")
    E(f"v_readfirstlane_b32 s{sW}, v2")
    E(f"s_and_b32 s{sT0}, s2, 7")
    E(f"s_lshr_b32 s{sT1}, s2, 3")
    E(f"s_and_b32 s{sMT}, s{sT0}, 3")
    E(f"s_lshl_b32 s{sMT}, s{sMT}, 2")
    E(f"s_and_b32 s{sT2}, s{sT1}, 3")
    E(f"s_add_u32 s{sMT}, s{sMT}, s{sT2}")
    E(f"s_lshr_b32 s{sNT}, s{sT0}, 2")
    E(f"s_lshl_b32 s{sNT}, s{sNT}, 3")
    E(f"s_lshr_b32 s{sT2}, s{sT1}, 2")
    E(f"s_add_u32 s{sNT}, s{sNT}, s{sT2}")
    E(f"s_mul_i32 s{sCOL}, s{sNT}, 96")
    if os.environ.get("K1ROT", "0") == "1":
        E(f"s_lshl_b32 s{sROT}, s{sMT}, 1")
        E(f"s_add_u32 s{sROT}, s{sROT}, s{sNT}")
    else:
        E(f"s_add_u32 s{sROT}, s{sMT}, s{sNT}")
    for t in range(4):
        E(f"s_lshl_b32 s{sT0}, s{sW}, 5")
        E(f"s_add_u32 s{sT0}, s{sT0}, {8*t}")
        E(f"v_lshrrev_b32 v2, 3, v{vLANE}")
        E(f"v_add_u32 v2, s{sT0}, v2")
        E(f"v_lshrrev_b32 v3, 1, v2")
        E(f"v_and_b32 v3, 7, v3")
        E(f"v_and_b32 v4, 7, v{vLANE}")
        E(f"v_xor_b32 v3, v3, v4")
        E(f"s_lshl_b32 s{sT0}, s{sMT}, 7")
        E(f"v_add_u32 v2, s{sT0}, v2")
        E(f"v_lshlrev_b32 v2, 10, v2")
        E(f"v_lshl_add_u32 v{vXD+t}, v3, 4, v2")
    for t in range(3):
        E(f"s_mul_i32 s{sT0}, s{sW}, 192")
        E(f"s_add_u32 s{sT0}, s{sT0}, {64*t}")
        E(f"v_add_u32 v2, s{sT0}, v{vLANE}")
        E(f"v_mul_u32_u24 v3, 5462, v2")
        E(f"v_lshrrev_b32 v3, 16, v3")
        E(f"v_mul_u32_u24 v4, 12, v3")
        E(f"v_sub_u32 v4, v2, v4")
        E(f"v_mul_u32_u24 v3, 3072, v3")
        E(f"v_lshl_add_u32 v3, v4, 4, v3")
        E(f"s_lshl_b32 s{sT0}, s{sCOL}, 1")
        E(f"v_add_u32 v{vWD+t}, s{sT0}, v3")
    E(f"s_lshl_b32 s{sXM0}, s{sW}, 12")
    E(f"s_mul_i32 s{sWM0}, s{sW}, 3072")
    E(f"s_add_u32 s{sWM0}, s{sWM0}, {XB}")
    E(f"s_lshl_b32 s{sT0}, s{sW}, 5")
    E(f"s_lshl_b32 s{sROW}, s{sMT}, 7")
    E(f"s_add_u32 s{sROW}, s{sROW}, s{sT0}")
    E("s_waitcnt lgkmcnt(0)")
    E.stamp()
    make_srd(E, S_X, 4, 2048 * 1024)
    make_srd(E, S_W, 6, 512 * 3072)
    def dma(st, j):
        slot = st % NS
        E(f"s_add_u32 s{sT0}, s{sROT}, {st}")
        E(f"s_and_b32 s{sT0}, s{sT0}, 7")
        if j < 4:
            E(f"s_lshl_b32 s{sT0}, s{sT0}, 7")
            E(f"s_add_u32 m0, s{sXM0}, {slot*SLOT + j*1024}")
            E("s_nop 0")
            E(f"buffer_load_dwordx4 v{vXD+j}, s[{S_X}:{S_X+3}], s{sT0} offen lds")
        else:
            t = j - 4
            E(f"s_mul_i32 s{sT0}, s{sT0}, {64*3072}")
            E(f"s_add_u32 m0, s{sWM0}, {slot*SLOT + t*1024}")
            E("s_nop 0")
            E(f"buffer_load_dwordx4 v{vWD+t}, s[{S_W}:{S_W+3}], s{sT0} offen lds")
        vm.issue(("st", st))
    make_srd(E, S_GW, 12, 1024)
    E(f"s_lshl_b32 s{sT0}, s2, 3")
    E(f"s_lshl_b32 s{sT1}, s{sW}, 1")
    E(f"s_add_u32 s{sT0}, s{sT0}, s{sT1}")
    E(f"s_lshl_b32 s{sT0}, s{sT0}, 10")
    E(f"v_lshlrev_b32 v2, 4, v{vLANE}")
    E(f"buffer_load_dwordx4 v[{vGX}:{vGX+3}], v2, s[{S_X}:{S_X+3}], s{sT0} offen"); vm.issue("misc")
    E(f"buffer_load_dwordx4 v[{vGX+4}:{vGX+7}], v2, s[{S_X}:{S_X+3}], s{sT0} offen offset:1024"); vm.issue("misc")
    E(f"buffer_load_dwordx4 v[{vGX+8}:{vGX+11}], v2, s[{S_GW}:{S_GW+3}], 0 offen"); vm.issue("misc")
    for st in range(PD):
        for j in range(7):
            dma(st, j)
    make_srd(E, S_WS, 14, WS_SIZE)
    E.stamp()
    E(f"s_lshl_b32 s{sT0}, s{sW}, 5")
    E(f"v_and_b32 v2, 31, v{vLANE}")
    E(f"v_add_u32 v2, s{sT0}, v2")
    E(f"v_lshrrev_b32 v3, 1, v2")
    E(f"v_and_b32 v3, 7, v3")
    E(f"v_lshrrev_b32 v4, 5, v{vLANE}")
    E(f"v_lshlrev_b32 v2, 7, v2")
    for t in range(4):
        E(f"v_add_u32 v5, {2*t}, v4")
        E(f"v_xor_b32 v5, v5, v3")
        E(f"v_lshl_add_u32 v{vXA+t}, v5, 4, v2")
    E(f"v_lshrrev_b32 v2, 5, v{vLANE}")
    E(f"v_lshlrev_b32 v2, 3, v2")
    E(f"v_bfe_u32 v3, v{vLANE}, 2, 2")
    E(f"v_add_u32 v2, v2, v3")
    E(f"v_mul_u32_u24 v2, 192, v2")
    E(f"v_and_b32 v4, 3, v{vLANE}")
    E(f"v_lshl_add_u32 v2, v4, 3, v2")
    E(f"v_bfe_u32 v4, v{vLANE}, 4, 1")
    E(f"v_lshl_add_u32 v2, v4, 5, v2")
    E(f"v_add_u32 v{vWA}, {XB}, v2")
    for i in range(48):
        E(f"v_mov_b32 v{vACC+i}, 0")
    vm.wait("misc")
    w = vGX + 8; t0 = vGX + 12
    for r in range(2):
        a = vGX + 4 * r
        g = vG + r
        for d in range(4):
            E(f"v_lshlrev_b32 v{t0}, 16, v{a+d}")
            E(f"v_lshlrev_b32 v{t0+1}, 16, v{w+d}")
            E(f"v_and_b32 v{t0+2}, 0xffff0000, v{a+d}")
            E(f"v_and_b32 v{t0+3}, 0xffff0000, v{w+d}")
            E(f"v_mul_f32 v{t0}, v{t0}, v{t0+1}")
            E(f"v_mul_f32 v{t0+2}, v{t0+2}, v{t0+3}")
            E(f"v_cvt_pk_bf16_f32 v{t0}, v{t0}, v{t0+2}")
            E(f"v_lshlrev_b32 v{t0+1}, 16, v{t0}")
            E(f"v_and_b32 v{t0+2}, 0xffff0000, v{t0}")
            if d == 0:
                E(f"v_add_f32 v{g}, v{t0+1}, v{t0+2}")
            else:
                E(f"v_add_f32 v{g}, v{g}, v{t0+1}")
                E(f"v_add_f32 v{g}, v{g}, v{t0+2}")
    for m in (1, 2, 4, 8, 16, 32):
        E(f"v_xor_b32 v{t0}, {m}, v{vLANE}")
        E(f"v_lshlrev_b32 v{t0}, 2, v{t0}")
        E(f"ds_bpermute_b32 v{t0+1}, v{t0}, v{vG}")
        E(f"ds_bpermute_b32 v{t0+2}, v{t0}, v{vG+1}")
        E("s_waitcnt lgkmcnt(0)")
        E(f"v_add_f32 v{vG}, v{vG}, v{t0+1}")
        E(f"v_add_f32 v{vG+1}, v{vG+1}, v{t0+2}")
    E(f"v_cmp_eq_u32 vcc, 1, v{vLANE}")
    E("s_nop 1")
    E(f"v_cndmask_b32 v{vG}, v{vG}, v{vG+1}, vcc")
    E(f"v_cvt_pk_bf16_f32 v{vG}, v{vG}, v{vG}")
    E(f"v_lshlrev_b32 v{vG}, 16, v{vG}")
    E(f"v_mul_f32 v{vG}, {hex(f32bits(-LOG2E))}, v{vG}")
    E(f"v_exp_f32 v{vG}, v{vG}")
    E("s_nop 0")
    E(f"v_add_f32 v{vG}, 1.0, v{vG}")
    E(f"v_rcp_f32 v{vG}, v{vG}")
    E("s_nop 0")
    E(f"v_cvt_pk_bf16_f32 v{vG}, v{vG}, v{vG}")
    E(f"v_lshlrev_b32 v{vG}, 16, v{vG}")
    E.stamp()
    E(f"s_cmp_ge_u32 s{sCOL}, 1024")
    E("s_cbranch_scc1 K1_NNN")
    E(f"s_cmp_eq_u32 s{sCOL}, 960")
    E("s_cbranch_scc1 K1_TTN")
    E("s_branch K1_TTT")
    def read_list(t, buf):
        L = [f"ds_read_b128 v[{vXF+4*buf}:{vXF+4*buf+3}], v{vXA+t}"]
        for b in range(3):
            for e in range(2):
                off = (16 * t + 4 * e) * 192 + 64 * b
                d = vWF + 12 * buf + 4 * b + 2 * e
                L.append(f"ds_read_b64_tr_b16 v[{d}:{d+1}], v{vWA} offset:{off}")
        return L
    snap = vm.snap()
    def bump(st):
        delta = SLOT if (st % NS) != 0 else -(NS - 1) * SLOT
        for r in list(range(vXA, vXA + 4)) + [vWA]:
            if delta > 0:
                E(f"v_add_u32 v{r}, {delta}, v{r}")
            else:
                E(f"v_subrev_u32 v{r}, {-delta}, v{r}")
    def main_loop(pat):
        E.nstamp = 3
        vm.restore(snap)
        vm.wait(("st", 0))
        E("s_barrier")
        E.stamp()
        for l in read_list(0, 0): E(l)
        pend = []
        for st in range(NST):
            for t in range(4):
                buf = t & 1
                last = (st == NST - 1 and t == 3)
                if t == 3 and not last:
                    bump(st + 1)
                nxt = [] if last else read_list((t + 1) & 3, buf ^ 1)
                for l in nxt: E(l)
                E(f"s_waitcnt lgkmcnt({len(nxt)})")
                for b in range(3):
                    xf = f"v[{vXF+4*buf}:{vXF+4*buf+3}]"
                    wf = f"v[{vWF+12*buf+4*b}:{vWF+12*buf+4*b+3}]"
                    acc = f"v[{vACC+16*b}:{vACC+16*b+15}]"
                    if pat[b] == 'T':
                        E(f"v_mfma_f32_32x32x16_bf16 {acc}, {wf}, {xf}, {acc}")
                    else:
                        E(f"v_mfma_f32_32x32x16_bf16 {acc}, {xf}, {wf}, {acc}")
                    if pend and b < 2:
                        dma(*pend.pop(0))
                if t == 1 and st + 1 < NST:
                    while pend: dma(*pend.pop(0))
                    vm.wait(("st", st + 1))
                    E("s_barrier")
                    E.stamp()
                    if st + PD < NST:
                        pend = [(st + PD, j) for j in range(7)]
    for pat in ("TTT", "TTN", "NNN"):
        E.label(f"K1_{pat}")
        main_loop(pat)
        E("s_branch K1_EPI")
    E.label("K1_EPI")
    vR, vH, vT = 2, 3, 4
    E(f"v_and_b32 v{vR}, 31, v{vLANE}")
    E(f"v_lshrrev_b32 v{vH}, 5, v{vLANE}")
    E("s_nop 15")
    E.stamp()
    P = vXF
    for b in range(3):
        acc = vACC + 16 * b
        tag = f"{b}"
        E(f"s_add_u32 s{sT0}, s{sCOL}, {32*b}")
        E(f"s_lshr_b32 s{sT2}, s{sT0}, 9")
        E(f"s_and_b32 s{sT0}, s{sT0}, 511")
        E(f"s_lshr_b32 s{sT0}, s{sT0}, 4")
        E(f"s_cmp_eq_u32 s{sT2}, 1")
        E(f"s_cbranch_scc1 K1_EK{tag}")
        E(f"s_cmp_eq_u32 s{sT2}, 2")
        E(f"s_cbranch_scc1 K1_EV{tag}")
        for i in range(16):
            E(f"v_mul_f32 v{acc+i}, {hex(f32bits(QSCALE))}, v{acc+i}")
        for i in range(8):
            E(f"v_cvt_pk_bf16_f32 v{P+i}, v{acc+2*i}, v{acc+2*i+1}")
        E(f"v_add_u32 v{vT}, s{sROW}, v{vR}")
        E(f"v_lshlrev_b32 v{vT}, 5, v{vT}")
        E(f"v_lshl_add_u32 v{vT}, v{vH}, 4, v{vT}")
        E(f"s_lshl_b32 s{sT0}, s{sT0}, 16")
        E(f"s_add_u32 s{sT0}, s{sT0}, {WS_Q}")
        E(f"buffer_store_dwordx4 v[{P}:{P+3}], v{vT}, s[{S_WS}:{S_WS+3}], s{sT0} offen")
        E(f"s_add_u32 s{sT0}, s{sT0}, 65536")
        E(f"buffer_store_dwordx4 v[{P+4}:{P+7}], v{vT}, s[{S_WS}:{S_WS+3}], s{sT0} offen")
        E(f"s_branch K1_EN{tag}")
        E.label(f"K1_EK{tag}")
        for i in range(8):
            E(f"v_cvt_pk_bf16_f32 v{P+i}, v{acc+2*i}, v{acc+2*i+1}")
        E(f"v_lshlrev_b32 v{vT}, 4, v{vR}")
        E(f"v_lshl_add_u32 v{vT}, v{vH}, 9, v{vT}")
        E(f"s_lshl_b32 s{sT0}, s{sT0}, 16")
        E(f"s_lshl_b32 s{sT2}, s{sROW}, 5")
        E(f"s_add_u32 s{sT0}, s{sT0}, s{sT2}")
        E(f"s_add_u32 s{sT0}, s{sT0}, {WS_K}")
        E(f"buffer_store_dwordx4 v[{P}:{P+3}], v{vT}, s[{S_WS}:{S_WS+3}], s{sT0} offen")
        E(f"s_add_u32 s{sT0}, s{sT0}, 65536")
        E(f"buffer_store_dwordx4 v[{P+4}:{P+7}], v{vT}, s[{S_WS}:{S_WS+3}], s{sT0} offen")
        E(f"s_branch K1_EN{tag}")
        E.label(f"K1_EV{tag}")
        for i in range(8):
            E(f"v_cvt_pk_bf16_f32 v{P+i}, v{acc+2*i}, v{acc+2*i+1}")
        E(f"v_and_b32 v{vT}, 15, v{vR}")
        E(f"v_lshlrev_b32 v{vT}, 4, v{vT}")
        E(f"v_lshl_add_u32 v{vT}, v{vH}, 8, v{vT}")
        E(f"v_lshrrev_b32 v{vT+1}, 4, v{vR}")
        E(f"v_lshl_add_u32 v{vT}, v{vT+1}, 16, v{vT}")
        E(f"s_lshl_b32 s{sT0}, s{sT0}, 16")
        E(f"s_lshl_b32 s{sT2}, s{sROW}, 5")
        E(f"s_add_u32 s{sT0}, s{sT0}, s{sT2}")
        E(f"s_add_u32 s{sT0}, s{sT0}, {WS_V}")
        E(f"buffer_store_dwordx4 v[{P}:{P+3}], v{vT}, s[{S_WS}:{S_WS+3}], s{sT0} offen")
        E(f"buffer_store_dwordx4 v[{P+4}:{P+7}], v{vT}, s[{S_WS}:{S_WS+3}], s{sT0} offen offset:512")
        E.label(f"K1_EN{tag}")
        E("s_nop 1")
    E.nstamp = 12
    E.stamp()
    E.dump_stamps(S_WS, sW, 0)
    E(f"s_lshl_b32 s{sT0}, s2, 3")
    E(f"s_lshl_b32 s{sT1}, s{sW}, 1")
    E(f"s_add_u32 s{sT0}, s{sT0}, s{sT1}")
    E(f"s_lshl_b32 s{sT0}, s{sT0}, 2")
    E(f"s_add_u32 s{sT0}, s{sT0}, {WS_G}")
    E(f"v_lshlrev_b32 v2, 2, v{vLANE}")
    E(f"v_cmp_gt_u32 vcc, 2, v{vLANE}")
    E("s_and_saveexec_b64 s[64:65], vcc")
    E(f"buffer_store_dword v{vG}, v2, s[{S_WS}:{S_WS+3}], s{sT0} offen")
    E("s_mov_b64 exec, s[64:65]")
    E.label("K1_END")
    E("s_endpgm")
    return name, 128

def gen_k2_gwave(E, S_WS, sW, sH, sQB):
    vm = VM(E)
    S_X, S_W1, S_B1 = 24, 28, 32
    sT0, sT1, sCOL, sROW, sM0, sGW = 43, 44, 45, 46, 47, 48
    vLANE = 1
    vWD = 4
    vXD = 7
    vWA = 8
    vBIAS = 9
    vT = 12
    vXF = 16
    vWF = 32
    vB = 44
    vACC = 64
    vX = 112
    GBASE = 131072; GSZ = 6144; SL = 3072
    E.label("K2_G")
    E("s_load_dwordx2 s[4:5], s[0:1], 0")
    E("s_load_dwordx4 s[8:11], s[0:1], 32")
    E(f"s_sub_u32 s{sGW}, s{sW}, 8")
    E(f"s_lshl_b32 s{sT0}, s{sH}, 2")
    E(f"s_add_u32 s{sT0}, s{sT0}, s{sGW}")
    E(f"s_and_b32 s{sT1}, s{sT0}, 7")
    E(f"s_lshl_b32 s{sROW}, s{sQB}, 3")
    E(f"s_add_u32 s{sROW}, s{sROW}, s{sT1}")
    E(f"s_lshl_b32 s{sROW}, s{sROW}, 5")
    E(f"s_lshr_b32 s{sT1}, s{sT0}, 3")
    E(f"s_mul_i32 s{sCOL}, s{sT1}, 96")
    E(f"s_cmp_lt_u32 s{sT1}, {0 if os.environ.get('XG','')=='off' else 15}")
    E("s_cbranch_scc1 K2_GGO")
    UPF = os.environ.get("K2UP", "0") == "1"
    for i in range(2 if UPF else 4):
        E("s_barrier")
    E("s_endpgm")
    E.label("K2_GGO")
    E(f"s_mul_i32 s{sM0}, s{sGW}, {GSZ}")
    E(f"s_add_u32 s{sM0}, s{sM0}, {GBASE}")
    for t in range(3):
        E(f"v_add_u32 v2, {64*t}, v{vLANE}")
        E(f"v_mul_u32_u24 v3, 5462, v2")
        E(f"v_lshrrev_b32 v3, 16, v3")
        E(f"v_mul_u32_u24 v12, 12, v3")
        E(f"v_sub_u32 v12, v2, v12")
        E(f"v_mul_u32_u24 v3, 2752, v3")
        E(f"v_lshl_add_u32 v3, v12, 4, v3")
        E(f"s_lshl_b32 s{sT0}, s{sCOL}, 1")
        E(f"v_add_u32 v{vWD+t}, s{sT0}, v3")
    E(f"v_and_b32 v2, 31, v{vLANE}")
    E(f"v_add_u32 v2, s{sROW}, v2")
    E(f"v_lshlrev_b32 v2, 10, v2")
    E(f"v_lshrrev_b32 v3, 5, v{vLANE}")
    E(f"v_lshl_add_u32 v{vXD}, v3, 4, v2")
    E(f"v_lshrrev_b32 v2, 5, v{vLANE}")
    E(f"v_lshlrev_b32 v2, 3, v2")
    E(f"v_bfe_u32 v3, v{vLANE}, 2, 2")
    E(f"v_add_u32 v2, v2, v3")
    E(f"v_mul_u32_u24 v2, 192, v2")
    E(f"v_and_b32 v3, 3, v{vLANE}")
    E(f"v_lshl_add_u32 v2, v3, 3, v2")
    E(f"v_bfe_u32 v3, v{vLANE}, 4, 1")
    E(f"v_lshl_add_u32 v2, v3, 5, v2")
    E(f"v_add_u32 v{vWA}, s{sM0}, v2")
    E("s_waitcnt lgkmcnt(0)")
    make_srd(E, S_X, 4, 2048 * 1024)
    make_srd(E, S_W1, 8, 512 * 2752)
    make_srd(E, S_B1, 10, 1376 * 2)
    def dmaW(c):
        E(f"s_mov_b32 s{sT0}, {c*16*2752}")
        for t in range(3):
            E(f"s_add_u32 m0, s{sM0}, {(c%2)*SL + t*1024}")
            E("s_nop 0")
            E(f"buffer_load_dwordx4 v{vWD+t}, s[{S_W1}:{S_W1+3}], s{sT0} offen lds"); vm.issue(("w", c))
    def ldX(c):
        d = vXF + 4 * (c % 4)
        E(f"buffer_load_dwordx4 v[{d}:{d+3}], v{vXD}, s[{S_X}:{S_X+3}], 0 offen offset:{c*32}"); vm.issue(("x", c))
    E(f"v_lshlrev_b32 v2, 1, v{vLANE}")
    E(f"v_cmp_gt_u32 vcc, 32, v{vLANE}")
    E(f"v_mov_b32 v3, 0x7fff0000")
    E(f"s_lshl_b32 s{sT0}, s{sCOL}, 1")
    E(f"v_cndmask_b32 v2, v3, v2, vcc")
    for b in range(3):
        E(f"buffer_load_ushort v{vBIAS+b}, v2, s[{S_B1}:{S_B1+3}], s{sT0} offen offset:{64*b}"); vm.issue("b")
    ldX(0); dmaW(0); ldX(1); dmaW(1); ldX(2); ldX(3)
    for i in range(48):
        E(f"v_mov_b32 v{vACC+i}, 0")
    for c in range(32):
        if c in ((0, 2) if UPF else (0, 2, 6, 12)):
            E("s_barrier")
        iw = max(i for i, t in enumerate(vm.ops) if t in (("w", c), ("x", c)))
        E(f"s_waitcnt vmcnt({len(vm.ops) - 1 - iw})")
        for b in range(3):
            for e in range(2):
                d = vWF + 4 * b + 2 * e
                E(f"ds_read_b64_tr_b16 v[{d}:{d+1}], v{vWA} offset:{(c%2)*SL + 4*e*192 + 64*b}")
        E("s_waitcnt lgkmcnt(0)")
        xf = vXF + 4 * (c % 4)
        for b in range(3):
            acc = f"v[{vACC+16*b}:{vACC+16*b+15}]"
            E(f"v_mfma_f32_32x32x16_bf16 {acc}, v[{vWF+4*b}:{vWF+4*b+3}], v[{xf}:{xf+3}], {acc}")
        if c + 2 < 32: dmaW(c + 2)
        if c + 4 < 32: ldX(c + 4)
    B = vB; X = vX
    E(f"v_cmp_gt_u32 vcc, 32, v{vLANE}")
    E(f"v_mov_b32 v{B}, 0x3f80")
    for i in range(1, 4):
        E(f"v_mov_b32 v{B+i}, 0")
    E(f"v_cndmask_b32 v{B}, 0, v{B}, vcc")
    for b in range(3):
        for i in range(1, 4):
            E(f"v_mov_b32 v{B+4+4*b+i}, 0")
        E(f"v_mov_b32 v{B+4+4*b}, v{vBIAS+b}")
    E("s_nop 1")
    for b in range(3):
        acc = f"v[{vACC+16*b}:{vACC+16*b+15}]"
        E(f"v_mfma_f32_32x32x16_bf16 {acc}, v[{B+4+4*b}:{B+7+4*b}], v[{B}:{B+3}], {acc}")
    E(f"v_and_b32 v2, 31, v{vLANE}")
    E(f"v_lshrrev_b32 v3, 5, v{vLANE}")
    E(f"v_add_u32 v{vT}, s{sROW}, v2")
    E(f"v_mul_u32_u24 v{vT}, 2752, v{vT}")
    E(f"v_lshl_add_u32 v{vT}, v3, 4, v{vT}")
    E(f"s_mov_b32 s60, {hex(f32bits(LOG2E))}")
    E(f"s_mov_b32 s61, s60")
    E(f"s_mov_b32 s62, 2.0")
    E(f"s_mov_b32 s63, 2.0")
    E("s_nop 15")
    for b in range(3):
        acc = vACC + 16 * b
        E(f"s_add_u32 s{sT0}, s{sCOL}, {32*b}")
        E(f"s_cmp_ge_u32 s{sT0}, 1376")
        E(f"s_cbranch_scc1 K2_END")
        E(f"s_lshl_b32 s{sT0}, s{sT0}, 1")
        E(f"s_add_u32 s{sT0}, s{sT0}, {WS_ACT}")
        for i in range(0, 16, 2):
            E(f"v_pk_mul_f32 v[{X+i}:{X+i+1}], v[{acc+i}:{acc+i+1}], s[60:61]")
        for i in range(16):
            E(f"v_min_f32 v{X+i}, 0x42200000, v{X+i}")
        for i in range(16):
            E(f"v_exp_f32 v{X+i}, v{X+i}")
        for i in range(0, 16, 2):
            E(f"v_pk_add_f32 v[{B+i}:{B+i+1}], v[{X+i}:{X+i+1}], s[62:63]")
        for i in range(0, 16, 2):
            E(f"v_pk_mul_f32 v[{X+i}:{X+i+1}], v[{X+i}:{X+i+1}], v[{B+i}:{B+i+1}]")
        for i in range(0, 16, 2):
            E(f"v_pk_add_f32 v[{B+i}:{B+i+1}], v[{X+i}:{X+i+1}], s[62:63]")
        for i in range(16):
            E(f"v_rcp_f32 v{B+i}, v{B+i}")
        for i in range(0, 16, 2):
            E(f"v_pk_mul_f32 v[{X+i}:{X+i+1}], v[{X+i}:{X+i+1}], v[{acc+i}:{acc+i+1}]")
        for i in range(0, 16, 2):
            E(f"v_pk_mul_f32 v[{X+i}:{X+i+1}], v[{X+i}:{X+i+1}], v[{B+i}:{B+i+1}]")
        for i in range(8):
            E(f"v_cvt_pk_bf16_f32 v{B+i}, v{X+2*i}, v{X+2*i+1}")
        E(f"buffer_store_dwordx4 v[{B}:{B+3}], v{vT}, s[{S_WS}:{S_WS+3}], s{sT0} offen")
        E(f"buffer_store_dwordx4 v[{B+4}:{B+7}], v{vT}, s[{S_WS}:{S_WS+3}], s{sT0} offen offset:32")
        E("s_nop 1")
    E("s_branch K2_END")

def gen_k2(E):
    name = "k2_attn_kernel"
    kernel_start(E, name)
    S_WS = 20
    sW, sH, sQB, sT0, sT1, sPASS, sIT = 40, 41, 42, 43, 44, 45, 46
    vLANE = 1
    vKA, vVA = 4, 5
    vDMA = 6
    vQ = 8
    vKF = 12
    vVF = 20
    vP = 36
    vS = 48
    vC = 80
    vO = 96
    vT = 112
    E("s_cmp_ge_u32 s2, 256")
    E("s_cbranch_scc1 K2_END")
    E("s_load_dwordx2 s[14:15], s[0:1], 80")
    E(f"v_and_b32 v{vLANE}, 63, v0")
    E("v_lshrrev_b32 v2, 6, v0")
    E("s_nop 0")
    E(f"v_readfirstlane_b32 s{sW}, v2")
    if os.environ.get("K2MAP", "0") == "0":
        E(f"s_and_b32 s{sQB}, s2, 7")
        E(f"s_lshr_b32 s{sH}, s2, 3")
    else:
        E(f"s_and_b32 s{sT0}, s2, 7")
        E(f"s_lshl_b32 s{sH}, s{sT0}, 2")
        E(f"s_lshr_b32 s{sT0}, s2, 6")
        E(f"s_add_u32 s{sH}, s{sH}, s{sT0}")
        E(f"s_lshr_b32 s{sQB}, s2, 3")
        E(f"s_and_b32 s{sQB}, s{sQB}, 7")
    E("s_load_dwordx2 s[4:5], s[0:1], 16")
    E("s_load_dwordx2 s[6:7], s[0:1], 48")
    E("s_waitcnt lgkmcnt(0)")
    E.stamp()
    if DIAG:
        E("s_memrealtime s[96:97]")
        E("s_waitcnt lgkmcnt(0)")
    make_srd(E, S_WS, 14, WS_SIZE)
    E(f"s_cmp_ge_u32 s{sW}, 8")
    E("s_cbranch_scc1 K2_G")
    if os.environ.get("XG", "") == "prio":
        E("s_setprio 2")
    make_srd(E, 24, 4, 512 * 1024)
    make_srd(E, 28, 6, 1376 * 1024)
    E(f"v_and_b32 v2, 31, v{vLANE}")
    E(f"v_lshrrev_b32 v3, 5, v{vLANE}")
    E(f"v_lshlrev_b32 v2, 5, v2")
    E(f"v_lshl_add_u32 v2, v3, 4, v2")
    E(f"s_lshl_b32 s{sT0}, s{sH}, 11")
    E(f"s_lshl_b32 s{sT1}, s{sQB}, 8")
    E(f"s_add_u32 s{sT0}, s{sT0}, s{sT1}")
    E(f"s_lshl_b32 s{sT1}, s{sW}, 5")
    E(f"s_add_u32 s{sT0}, s{sT0}, s{sT1}")
    E(f"s_lshl_b32 s{sT0}, s{sT0}, 5")
    E(f"s_add_u32 s{sT0}, s{sT0}, {WS_Q}")
    E(f"buffer_load_dwordx4 v[{vQ}:{vQ+3}], v2, s[{S_WS}:{S_WS+3}], s{sT0} offen")
    E(f"v_lshlrev_b32 v{vDMA}, 4, v{vLANE}")
    E(f"s_lshl_b32 s{sT1}, s{sW}, 10")
    E(f"s_lshl_b32 s{sT0}, s{sH}, 16")
    E(f"s_add_u32 s{sT0}, s{sT0}, s{sT1}")
    E(f"s_mov_b32 s48, s{sT1}")
    E(f"s_add_u32 s49, s{sT0}, {WS_K}")
    def dma_chunk():
        E(f"s_mov_b32 m0, s48")
        E(f"s_add_u32 s50, s49, {WS_V - WS_K}")
        E(f"buffer_load_dwordx4 v{vDMA}, s[{S_WS}:{S_WS+3}], s49 offen lds")
        E(f"s_add_u32 m0, s48, 65536")
        E(f"s_add_u32 s48, s48, 8192")
        E(f"buffer_load_dwordx4 v{vDMA}, s[{S_WS}:{S_WS+3}], s50 offen lds")
        E(f"s_add_u32 s49, s49, 8192")
    UPF = os.environ.get("K2UP", "0") == "1"
    for _ in range(8 if UPF else 1):
        dma_chunk()
    E(f"v_and_b32 v2, 31, v{vLANE}")
    E(f"v_cmp_eq_u32 vcc, 16, v2")
    E(f"v_mov_b32 v3, 0x3f803f80")
    E("s_nop 0")
    E(f"v_cndmask_b32 v3, 0, v3, vcc")
    for i in range(16):
        E(f"v_mov_b32 v{vVF+i}, v3")
    E("s_mov_b32 s52, 0x0000ffff")
    E("s_mov_b32 s53, 0x0000ffff")
    E(f"s_mov_b32 s{sPASS}, 0")
    E.stamp()
    E("s_waitcnt vmcnt(14)" if UPF else "s_waitcnt vmcnt(0)")
    E("s_barrier")
    E.stamp()
    E(f"v_lshlrev_b32 v{vKA}, 4, v{vLANE}")
    E(f"ds_read_b128 v[{vKF}:{vKF+3}], v{vKA}")
    E("s_waitcnt lgkmcnt(0)")
    E(f"v_mfma_f32_32x32x16_bf16 v[{vS}:{vS+15}], v[{vKF}:{vKF+3}], v[{vQ}:{vQ+3}], 0")
    E("s_nop 15")
    def rowmax16(src, dst):
        E(f"v_max3_f32 v{dst}, v{src}, v{src+1}, v{src+2}")
        for i in range(3, 15, 2):
            E(f"v_max3_f32 v{dst}, v{dst}, v{src+i}, v{src+i+1}")
        E(f"v_max_f32 v{dst}, v{dst}, v{src+15}")
    def cross_half_max(reg):
        E(f"v_mov_b32 v{vT+1}, v{reg}")
        E(f"v_mov_b32 v{vT+2}, v{reg}")
        E("s_nop 1")
        E(f"v_permlane32_swap_b32 v{vT+1}, v{vT+2}")
        E("s_nop 1")
        E(f"v_max_f32 v{reg}, v{vT+1}, v{vT+2}")
    rowmax16(vS, vT)
    cross_half_max(vT)
    E.label("K2_RUN")
    for i in range(16):
        E(f"v_sub_f32 v{vC+i}, 0, v{vT}")
    for i in range(16):
        E(f"v_mov_b32 v{vO+i}, 0")
    E(f"v_lshlrev_b32 v{vKA}, 4, v{vLANE}")
    E(f"v_and_b32 v2, 31, v{vLANE}")
    E(f"v_lshrrev_b32 v3, 5, v{vLANE}")
    E(f"v_lshlrev_b32 v2, 4, v2")
    E(f"v_lshl_add_u32 v2, v3, 8, v2")
    E(f"v_add_u32 v{vVA}, 65536, v2")
    X_NOLDS = int(os.environ.get("X_NOLDS", "0"))
    X_NOEXEC = int(os.environ.get("X_NOEXEC", "0"))
    def rdK(buf, tile_off):
        if X_NOLDS: return
        E(f"ds_read_b128 v[{vKF+4*buf}:{vKF+4*buf+3}], v{vKA} offset:{tile_off*1024}")
    def rdV(buf, tile_off):
        if X_NOLDS: return
        if not X_NOEXEC: E("s_mov_b64 exec, s[52:53]")
        E(f"ds_read_b128 v[{vVF+8*buf}:{vVF+8*buf+3}], v{vVA} offset:{tile_off*1024}")
        E(f"ds_read_b128 v[{vVF+8*buf+4}:{vVF+8*buf+7}], v{vVA} offset:{tile_off*1024+512}")
        if not X_NOEXEC: E("s_mov_b64 exec, -1")
    def qk(sbuf, kbuf):
        E(f"v_mfma_f32_32x32x16_bf16 v[{vS+16*sbuf}:{vS+16*sbuf+15}], v[{vKF+4*kbuf}:{vKF+4*kbuf+3}], v[{vQ}:{vQ+3}], v[{vC}:{vC+15}]")
    rdK(0, 0); rdK(1, 1); rdV(0, 0)
    E("s_waitcnt lgkmcnt(3)")
    qk(0, 0)
    for i in range(4, 8):
        E(f"v_mov_b32 v{vP+i}, 0")
    def pv(vbuf, half2, preg):
        E(f"v_mfma_f32_32x32x16_bf16 v[{vO}:{vO+15}], v[{vVF+8*vbuf+4*half2}:{vVF+8*vbuf+4*half2+3}], v[{preg}:{preg+3}], v[{vO}:{vO+15}]")
    loopid = [0]
    def loop(n, with_dma):
        lid = loopid[0]; loopid[0] += 1
        E(f"s_mov_b32 s{sIT}, {-n & 0xffffffff}")
        E.raw(".p2align 3")
        E.label(f"K2_LOOP{lid}")
        if with_dma:
            dma_chunk()
            E("s_nop 0")
        for half in range(2):
            X = half; Y = half ^ 1
            sx = vS + 16 * X
            E("s_waitcnt lgkmcnt(2)")
            E(f"v_exp_f32 v{sx}, v{sx}")
            pv(Y, 1, vP + 4)
            qk(Y, Y)
            rdK(X, half + 2)
            for i in range(1, 8):
                E(f"v_exp_f32 v{sx+i}, v{sx+i}")
            E("s_mov_b64 exec, s[52:53]")
            E(f"ds_read_b128 v[{vVF+8*Y}:{vVF+8*Y+3}], v{vVA} offset:{(half+1)*1024}")
            E(f"ds_read_b128 v[{vVF+8*Y+4}:{vVF+8*Y+7}], v{vVA} offset:{(half+1)*1024+512}")
            E("s_mov_b64 exec, -1")
            E("s_waitcnt lgkmcnt(3)")
            for i in range(4):
                E(f"v_cvt_pk_bf16_f32 v{vP+i}, v{sx+2*i}, v{sx+2*i+1}")
            for i in range(8, 10):
                E(f"v_exp_f32 v{sx+i}, v{sx+i}")
            pv(X, 0, vP)
            for i in range(10, 16):
                E(f"v_exp_f32 v{sx+i}, v{sx+i}")
            for i in range(4, 8):
                E(f"v_cvt_pk_bf16_f32 v{vP+i}, v{sx+2*i}, v{sx+2*i+1}")
        E(f"v_add_u32 v{vKA}, 2048, v{vKA}")
        E(f"v_add_u32 v{vVA}, 2048, v{vVA}")
        E(f"s_add_u32 s{sIT}, s{sIT}, 1")
        E(f"s_cbranch_scc0 K2_LOOP{lid}")
    E(f"s_cmp_lg_u32 s{sPASS}, 0")
    E("s_cbranch_scc1 K2_PASS1")
    loop(3, True)
    E.stamp()
    E("s_waitcnt vmcnt(4)")
    E("s_barrier")
    E.stamp()
    loop(4, True)
    E("s_waitcnt vmcnt(8)")
    E("s_barrier")
    loop(8, False)
    E("s_waitcnt vmcnt(0)")
    E("s_barrier")
    E(f"s_lshl_b32 s58, s{sH}, 3")
    E(f"s_add_u32 s58, s58, s{sW}")
    E(f"s_lshl_b32 s59, s58, 11")
    for j in range(2):
        E(f"buffer_load_dwordx4 v[124:127], v{vDMA}, s[24:27], s59 offen offset:{1024*j}")
    E(f"s_mul_i32 s59, s58, 5504")
    for j in range(3):
        E(f"buffer_load_dwordx4 v[124:127], v{vDMA}, s[28:31], s59 offen offset:{1024*j}")
    E(f"s_add_u32 s59, s59, 3072")
    for j in range(3):
        E(f"buffer_load_dwordx4 v[124:127], v{vDMA}, s[28:31], s59 offen offset:{1024*j}")
    loop(17, False)
    E("s_branch K2_TAIL")
    E.label("K2_PASS1")
    loop(32, False)
    E.label("K2_TAIL")
    E("s_nop 1")
    pv(1, 1, vP + 4)
    E("s_waitcnt lgkmcnt(0)")
    E("s_nop 15")
    E.stamp()
    E(f"v_mov_b32 v{vT+1}, v{vO+8}")
    E(f"v_mov_b32 v{vT+2}, v{vO+8}")
    E("s_nop 1")
    E(f"v_permlane32_swap_b32 v{vT+1}, v{vT+2}")
    E(f"s_cmp_lg_u32 s{sPASS}, 0")
    E("s_cbranch_scc1 K2_FIN")
    E(f"v_max3_f32 v{vT+3}, |v{vO}|, |v{vO+1}|, |v{vO+2}|")
    E(f"v_max3_f32 v{vT+3}, v{vT+3}, |v{vO+3}|, |v{vO+4}|")
    E(f"v_max3_f32 v{vT+3}, v{vT+3}, |v{vO+5}|, |v{vO+6}|")
    E(f"v_max_f32 v{vT+3}, v{vT+3}, |v{vO+7}|")
    E(f"s_mov_b32 s54, 0x5d800000")
    E(f"s_mov_b32 s55, 0x7f000000")
    E(f"v_cmp_nlt_f32 vcc, v{vT+1}, s54")
    E(f"v_cmp_nlt_f32 s[56:57], v{vT+3}, s55")
    E("s_nop 1")
    E("s_or_b64 vcc, vcc, s[56:57]")
    E("s_cbranch_vccz K2_FIN")
    E(f"v_lshlrev_b32 v{vKA}, 4, v{vLANE}")
    E(f"v_mov_b32 v{vT}, 0xff800000")
    E(f"s_mov_b32 s{sIT}, 0")
    E.label("K2_MAXLOOP")
    E(f"ds_read_b128 v[{vKF}:{vKF+3}], v{vKA}")
    E("s_waitcnt lgkmcnt(0)")
    E(f"v_mfma_f32_32x32x16_bf16 v[{vS}:{vS+15}], v[{vKF}:{vKF+3}], v[{vQ}:{vQ+3}], 0")
    E("s_nop 15")
    for i in range(0, 16, 2):
        E(f"v_max3_f32 v{vT}, v{vT}, v{vS+i}, v{vS+i+1}")
    E(f"v_add_u32 v{vKA}, 1024, v{vKA}")
    E(f"s_add_u32 s{sIT}, s{sIT}, 1")
    E(f"s_cmp_lt_u32 s{sIT}, 64")
    E("s_cbranch_scc1 K2_MAXLOOP")
    cross_half_max(vT)
    E(f"s_mov_b32 s{sPASS}, 1")
    E("s_branch K2_RUN")
    E.label("K2_FIN")
    E(f"v_rcp_f32 v{vT+1}, v{vT+1}")
    E("s_nop 0")
    for i in range(8):
        E(f"v_mul_f32 v{vO+i}, v{vO+i}, v{vT+1}")
    for i in range(4):
        E(f"v_cvt_pk_bf16_f32 v{vP+i}, v{vO+2*i}, v{vO+2*i+1}")
    E(f"v_and_b32 v2, 31, v{vLANE}")
    E(f"v_lshrrev_b32 v3, 5, v{vLANE}")
    E(f"v_lshlrev_b32 v2, 10, v2")
    E(f"v_lshl_add_u32 v2, v3, 4, v2")
    E(f"s_lshl_b32 s{sT0}, s{sQB}, 8")
    E(f"s_lshl_b32 s{sT1}, s{sW}, 5")
    E(f"s_add_u32 s{sT0}, s{sT0}, s{sT1}")
    E(f"s_lshl_b32 s{sT0}, s{sT0}, 10")
    E(f"s_lshl_b32 s{sT1}, s{sH}, 5")
    E(f"s_add_u32 s{sT0}, s{sT0}, s{sT1}")
    E(f"s_add_u32 s{sT0}, s{sT0}, {WS_O}")
    E(f"buffer_store_dwordx4 v[{vP}:{vP+3}], v2, s[{S_WS}:{S_WS+3}], s{sT0} offen")
    E.stamp()
    if DIAG:
        E.rstamp()
        E(f"s_mov_b32 s{70+2*E.nstamp}, s96")
        E.nstamp += 1
    E.dump_stamps(S_WS, sW, 1)
    E.label("K2_END")
    E("s_endpgm")
    gen_k2_gwave(E, S_WS, sW, sH, sQB)
    return name, 128

def gen_k3(E):
    name = "k3_out_kernel"
    kernel_start(E, name)
    vm = VM(E)
    NS = 9; SLOT = 16384; AB = 8192
    S_WS, S_WO, S_W2, S_OUT = 20, 24, 28, 32
    sW, sMT, sNT, sT0, sT1, sAM0, sBM0, sROW, sKH, sWQ = 40, 41, 42, 43, 44, 45, 46, 47, 48, 49
    vLANE = 1
    vAD1 = 8
    vAD2 = 9
    vBD = 10
    vAA = 12
    vBA = 14
    vG = 15
    vAF = 24
    vBF = 32
    vACC1 = 48
    vACC2 = 64
    vT = 80
    E("s_cmp_ge_u32 s2, 256")
    E("s_cbranch_scc1 K3_END")
    E("s_load_dwordx2 s[4:5], s[0:1], 16")
    E("s_load_dwordx2 s[6:7], s[0:1], 48")
    E("s_load_dwordx2 s[8:9], s[0:1], 64")
    E("s_load_dwordx2 s[14:15], s[0:1], 80")
    E(f"v_and_b32 v{vLANE}, 63, v0")
    E("v_lshrrev_b32 v2, 6, v0")
    E("s_nop 0")
    E(f"v_readfirstlane_b32 s{sW}, v2")
    E(f"s_and_b32 s{sT0}, s2, 7")
    E(f"s_lshr_b32 s{sT1}, s2, 3")
    E(f"s_lshl_b32 s{sMT}, s{sT0}, 2")
    E(f"s_and_b32 s{sT0}, s{sT1}, 3")
    E(f"s_add_u32 s{sMT}, s{sMT}, s{sT0}")
    E(f"s_lshr_b32 s{sNT}, s{sT1}, 2")
    E(f"s_lshr_b32 s{sKH}, s{sW}, 2")
    E(f"s_and_b32 s{sWQ}, s{sW}, 3")
    E(f"s_lshl_b32 s{sT0}, s{sW}, 3")
    E(f"v_lshrrev_b32 v2, 3, v{vLANE}")
    E(f"v_add_u32 v2, s{sT0}, v2")
    E(f"v_lshrrev_b32 v3, 1, v2")
    E(f"v_and_b32 v3, 7, v3")
    E(f"v_and_b32 v4, 7, v{vLANE}")
    E(f"v_xor_b32 v3, v3, v4")
    E(f"s_lshl_b32 s{sT0}, s{sMT}, 6")
    E(f"v_add_u32 v5, s{sT0}, v2")
    E(f"v_lshlrev_b32 v6, 10, v5")
    E(f"v_lshl_add_u32 v6, v3, 4, v6")
    E(f"v_add_u32 v{vAD1}, {WS_O}, v6")
    E(f"v_mul_u32_u24 v6, 2752, v5")
    E(f"v_lshl_add_u32 v6, v3, 4, v6")
    E(f"v_add_u32 v{vAD2}, {WS_ACT}, v6")
    E(f"v_lshlrev_b32 v3, 1, v2")
    E(f"v_and_b32 v3, 4, v3")
    E(f"v_xor_b32 v3, v3, v4")
    E(f"v_lshlrev_b32 v2, 10, v2")
    E(f"v_lshl_add_u32 v2, v3, 4, v2")
    E(f"s_lshl_b32 s{sT0}, s{sNT}, 7")
    E(f"v_add_u32 v{vBD}, s{sT0}, v2")
    E(f"s_lshl_b32 s{sAM0}, s{sW}, 10")
    E(f"s_add_u32 s{sBM0}, s{sAM0}, {AB}")
    E("s_waitcnt lgkmcnt(0)")
    E.stamp()
    make_srd(E, S_WS, 14, WS_SIZE)
    make_srd(E, S_WO, 4, 512 * 1024)
    make_srd(E, S_W2, 6, 1376 * 1024)
    make_srd(E, S_OUT, 8, 2048 * 1024)
    NST = 30
    def issue_stage(st):
        slot = st % NS
        if st < 8:
            ad, bs, ka = vAD1, S_WO, st
        else:
            ad, bs, ka = vAD2, S_W2, st - 8
        E(f"s_mov_b32 s{sT0}, {ka*128}")
        E(f"s_add_u32 m0, s{sAM0}, {slot*SLOT}")
        E("s_nop 0")
        E(f"buffer_load_dwordx4 v{ad}, s[{S_WS}:{S_WS+3}], s{sT0} offen lds"); vm.issue(st)
        E(f"s_mov_b32 s{sT0}, {ka*65536}")
        E(f"s_add_u32 m0, s{sBM0}, {slot*SLOT}")
        E("s_nop 0")
        E(f"buffer_load_dwordx4 v{vBD}, s[{bs}:{bs+3}], s{sT0} offen lds"); vm.issue(st)
    PD = NS - 1
    P0 = 3
    for st in range(P0):
        issue_stage(st)
    nxt_issue = P0
    E(f"s_and_b32 s{sT0}, s{sWQ}, 1")
    E(f"s_lshl_b32 s{sT0}, s{sT0}, 5")
    E(f"s_lshl_b32 s{sT1}, s{sMT}, 6")
    E(f"s_add_u32 s{sROW}, s{sT0}, s{sT1}")
    E(f"s_lshl_b32 s{sT0}, s{sROW}, 2")
    E(f"s_add_u32 s{sT0}, s{sT0}, {WS_G}")
    E(f"v_and_b32 v2, 31, v{vLANE}")
    E(f"v_lshlrev_b32 v2, 2, v2")
    E(f"buffer_load_dword v{vG}, v2, s[{S_WS}:{S_WS+3}], s{sT0} offen"); vm.issue("g")
    E.stamp()
    E(f"s_and_b32 s{sT0}, s{sWQ}, 1")
    E(f"s_lshl_b32 s{sT0}, s{sT0}, 5")
    E(f"v_and_b32 v2, 31, v{vLANE}")
    E(f"v_add_u32 v2, s{sT0}, v2")
    E(f"v_lshrrev_b32 v3, 1, v2")
    E(f"v_and_b32 v3, 7, v3")
    E(f"v_lshrrev_b32 v4, 5, v{vLANE}")
    E(f"v_lshlrev_b32 v2, 7, v2")
    E(f"s_lshl_b32 s{sT0}, s{sKH}, 2")
    E(f"v_add_u32 v4, s{sT0}, v4")
    for t in range(2):
        E(f"v_add_u32 v5, {2*t}, v4")
        E(f"v_xor_b32 v5, v5, v3")
        E(f"v_lshl_add_u32 v{vAA+t}, v5, 4, v2")
    E(f"v_lshrrev_b32 v2, 5, v{vLANE}")
    E(f"v_lshlrev_b32 v2, 2, v2")
    E(f"v_bfe_u32 v3, v{vLANE}, 2, 2")
    E(f"v_add_u32 v2, v2, v3")
    E(f"s_lshl_b32 s{sT0}, s{sKH}, 5")
    E(f"v_add_u32 v2, s{sT0}, v2")
    E(f"v_lshlrev_b32 v2, 7, v2")
    E(f"v_and_b32 v4, 1, v{vLANE}")
    E(f"v_lshl_add_u32 v2, v4, 3, v2")
    E(f"v_add_u32 v2, {AB}, v2")
    E(f"v_bfe_u32 v4, v{vLANE}, 4, 1")
    E(f"v_lshlrev_b32 v4, 1, v4")
    E(f"v_bfe_u32 v5, v{vLANE}, 1, 1")
    E(f"v_add_u32 v4, v4, v5")
    E(f"s_lshr_b32 s{sT0}, s{sWQ}, 1")
    E(f"s_lshl_b32 s{sT0}, s{sT0}, 2")
    E(f"v_add_u32 v4, s{sT0}, v4")
    E(f"v_lshlrev_b32 v3, 1, v3")
    E(f"v_and_b32 v3, 4, v3")
    E(f"v_xor_b32 v4, v4, v3")
    E(f"v_lshl_add_u32 v{vBA}, v4, 4, v2")
    for i in range(32):
        E(f"v_mov_b32 v{vACC1+i}, 0")
    def frag_reads(t, buf):
        E(f"ds_read_b128 v[{vAF+4*buf}:{vAF+4*buf+3}], v{vAA+t}")
        for e in range(2):
            off = (16 * t + 8 * e) * 128
            d = vBF + 4 * buf + 2 * e
            E(f"ds_read_b64_tr_b16 v[{d}:{d+1}], v{vBA} offset:{off}")
    def bump(st):
        delta = SLOT if (st % NS) != 0 else -(NS - 1) * SLOT
        for r in [vAA, vAA + 1, vBA]:
            if delta > 0:
                E(f"v_add_u32 v{r}, {delta}, v{r}")
            else:
                E(f"v_subrev_u32 v{r}, {-delta}, v{r}")
    vm.wait(0)
    E("s_barrier")
    E.stamp()
    frag_reads(0, 0)
    for st in range(NST):
        acc = vACC1 if st < 8 else vACC2
        lastst = (st == NST - 1)
        if lastst:
            E(f"s_cmp_lg_u32 s{sKH}, 0")
            E("s_cbranch_scc1 K3_SKIPLAST")
        frag_reads(1, 1)
        E("s_waitcnt lgkmcnt(3)")
        E(f"v_mfma_f32_32x32x16_bf16 v[{acc}:{acc+15}], v[{vBF}:{vBF+3}], v[{vAF}:{vAF+3}], v[{acc}:{acc+15}]")
        if not lastst:
            vm.wait(st + 1)
            E("s_barrier")
            if st + 1 in (1, 2, 4, 8, 12, 16, 20, 24, 29): E.stamp()
            for _ in range(2):
                if nxt_issue < NST and nxt_issue <= st + PD:
                    issue_stage(nxt_issue); nxt_issue += 1
            bump(st + 1)
            frag_reads(0, 0)
            E("s_waitcnt lgkmcnt(3)")
        else:
            E("s_waitcnt lgkmcnt(0)")
        E(f"v_mfma_f32_32x32x16_bf16 v[{acc}:{acc+15}], v[{vBF+4}:{vBF+7}], v[{vAF+4}:{vAF+7}], v[{acc}:{acc+15}]")
        if lastst:
            E.label("K3_SKIPLAST")
            E("s_waitcnt lgkmcnt(0)")
    E("s_nop 15")
    E("s_barrier")
    E(f"v_lshlrev_b32 v2, 4, v{vLANE}")
    E(f"s_lshl_b32 s{sT0}, s{sWQ}, 13")
    E(f"v_add_u32 v2, s{sT0}, v2")
    E(f"s_cmp_eq_u32 s{sKH}, 0")
    E("s_cbranch_scc1 K3_RD")
    for i in range(8):
        E(f"ds_write_b128 v2, v[{vACC1+4*i}:{vACC1+4*i+3}] offset:{1024*i}")
    E("s_waitcnt lgkmcnt(0)")
    E("s_barrier")
    E("s_branch K3_END")
    E.label("K3_RD")
    E("s_barrier")
    for i in range(8):
        E(f"ds_read_b128 v[{vT+16+4*i}:{vT+16+4*i+3}], v2 offset:{1024*i}")
    E("s_waitcnt lgkmcnt(0)")
    for i in range(0, 32, 2):
        E(f"v_pk_add_f32 v[{vACC1+i}:{vACC1+i+1}], v[{vACC1+i}:{vACC1+i+1}], v[{vT+16+i}:{vT+16+i+1}]")
    E.stamp()
    E(f"v_sub_f32 v{vT}, 1.0, v{vG}")
    E(f"v_cvt_pk_bf16_f32 v{vT}, v{vT}, v{vT}")
    E(f"v_lshlrev_b32 v{vT}, 16, v{vT}")
    def rnd_pair(r):
        E(f"v_cvt_pk_bf16_f32 v{vT+1}, v{r}, v{r+1}")
        E(f"v_lshlrev_b32 v{r}, 16, v{vT+1}")
        E(f"v_and_b32 v{r+1}, 0xffff0000, v{vT+1}")
    for i in range(0, 16, 2):
        rnd_pair(vACC1 + i); rnd_pair(vACC2 + i)
        E(f"v_mul_f32 v{vACC1+i}, v{vG}, v{vACC1+i}")
        E(f"v_mul_f32 v{vACC1+i+1}, v{vG}, v{vACC1+i+1}")
        E(f"v_mul_f32 v{vACC2+i}, v{vT}, v{vACC2+i}")
        E(f"v_mul_f32 v{vACC2+i+1}, v{vT}, v{vACC2+i+1}")
        rnd_pair(vACC1 + i); rnd_pair(vACC2 + i)
        E(f"v_add_f32 v{vACC1+i}, v{vACC1+i}, v{vACC2+i}")
        E(f"v_add_f32 v{vACC1+i+1}, v{vACC1+i+1}, v{vACC2+i+1}")
        E(f"v_cvt_pk_bf16_f32 v{vT+4+i//2}, v{vACC1+i}, v{vACC1+i+1}")
    E(f"v_and_b32 v2, 31, v{vLANE}")
    E(f"v_lshrrev_b32 v3, 5, v{vLANE}")
    E(f"v_lshlrev_b32 v2, 10, v2")
    E(f"v_lshl_add_u32 v2, v3, 3, v2")
    E(f"s_lshl_b32 s{sT0}, s{sROW}, 10")
    E(f"s_lshl_b32 s{sT1}, s{sNT}, 7")
    E(f"s_add_u32 s{sT0}, s{sT0}, s{sT1}")
    E(f"s_lshr_b32 s{sT1}, s{sWQ}, 1")
    E(f"s_lshl_b32 s{sT1}, s{sT1}, 6")
    E(f"s_add_u32 s{sT0}, s{sT0}, s{sT1}")
    for q in range(4):
        E(f"buffer_store_dwordx2 v[{vT+4+2*q}:{vT+5+2*q}], v2, s[{S_OUT}:{S_OUT+3}], s{sT0} offen offset:{16*q}")
    E.stamp()
    E.dump_stamps(S_WS, sW, 2)
    E.label("K3_END")
    E("s_endpgm")
    return name, 128

def main():
    hdr = open(f"cdna_kernels/{NAME}.s.ref").read().split("\n")
    head = [l for l in hdr if l.startswith(";") and "@launch" not in l]
    E = Asm()
    k1, v1 = gen_k1(E)
    k2, v2 = gen_k2(E)
    k3, v3 = gen_k3(E)
    out = "\n".join(head) + "\n"
    out += f"; @launch kernel={k1} grid=(256,1,1) block=(256,1,1) lds=143360\n"
    out += f"; @launch kernel={k2} grid=(256,1,1) block=(768,1,1) lds=155648\n"
    out += f"; @launch kernel={k3} grid=(256,1,1) block=(512,1,1) lds={9*16384}\n"
    out += '.amdgcn_target "amdgcn-amd-amdhsa--gfx950"\n.text\n'
    out += E.text()
    out += '.section .rodata,"a"\n'
    out += kernel_desc(k1, v1) + kernel_desc(k2, v2) + kernel_desc(k3, v3)
    open(OUT, "w").write(out)
    print("wrote", OUT, len(out))

if __name__ == "__main__":
    main()
```

```python
import sys, math

NAME = "gated_mix__softmax_full_mha__dense_activation_mish__prompt"
OUT = f"cdna_kernels/{NAME}.s"
import os as _os
if int(_os.environ.get("DIAG","0")): OUT = "diag.s"

WS_Q   = 0
WS_K   = 2 << 20
WS_V   = 4 << 20
WS_O   = 6 << 20
WS_ACT = 8 << 20
WS_G   = 14 << 20
WS_B   = 15 << 20
WS_SIZE = 18 << 20

LOG2E = 1.4426950408889634
QSCALE = 0.25 * LOG2E

def f32bits(x):
    import struct
    return struct.unpack("<I", struct.pack("<f", x))[0]

import os
DIAG = int(os.environ.get("DIAG", "0"))
WS_DBG = 17 << 20
class Asm:
    def __init__(self):
        self.lines = []
        self.nstamp = 0
    def stamp(self):
        if not DIAG: return
        r = 70 + 2 * self.nstamp
        assert r < 100
        self(f"s_memtime s[{r}:{r+1}]")
        self("s_waitcnt lgkmcnt(0)")
        self.nstamp += 1
    def rstamp(self):
        if not DIAG: return
        r = 70 + 2 * self.nstamp
        self(f"s_memrealtime s[{r}:{r+1}]")
        self("s_waitcnt lgkmcnt(0)")
        self.nstamp += 1
    def dump_stamps(self, srd, swave, kidx):
        if not DIAG: return
        self(f"s_lshl_b32 s68, s2, 4")
        self(f"s_add_u32 s68, s68, s{swave}")
        self(f"s_lshl_b32 s68, s68, 6")
        self(f"s_add_u32 s68, s68, {WS_DBG + kidx * 0x40000}")
        self(f"v_mov_b32 v2, 0")
        for i in range(self.nstamp):
            self(f"v_mov_b32 v3, s{70+2*i}")
            self(f"buffer_store_dword v3, v2, s[{srd}:{srd+3}], s68 offen offset:{4*i}")
            self("s_nop 1")
        self.nstamp = 0
    def __call__(self, s):
        self.lines.append("    " + s)
    def label(self, s):
        self.lines.append(s + ":")
    def raw(self, s):
        self.lines.append(s)
    def comment(self, s):
        self.lines.append("    ; " + s)
    def text(self):
        return "\n".join(self.lines) + "\n"

class VM:
    def __init__(self, E):
        self.E = E; self.ops = []
    def issue(self, tag):
        self.ops.append(tag)
    def wait(self, tag):
        idx = max(i for i, t in enumerate(self.ops) if t == tag)
        n = len(self.ops) - 1 - idx
        assert n <= 63
        self.E(f"s_waitcnt vmcnt({n})")
    def snap(self):
        return list(self.ops)
    def restore(self, s):
        self.ops = list(s)

def vr(a, n=1):
    return f"v{a}" if n == 1 else f"v[{a}:{a+n-1}]"
def sr(a, n=1):
    return f"s{a}" if n == 1 else f"s[{a}:{a+n-1}]"

def kernel_start(E, name):
    E.raw(f".globl {name}")
    E.raw(".p2align 8")
    E.raw(f".type {name},@function")
    E.label(name)

def kernel_desc(name, vgpr, sgpr=102):
    acc = (vgpr + 3) // 4 * 4
    return f""".p2align 6
.amdhsa_kernel {name}
  .amdhsa_next_free_vgpr {vgpr}
  .amdhsa_next_free_sgpr {sgpr}
  .amdhsa_accum_offset {acc}
  .amdhsa_group_segment_fixed_size 0
  .amdhsa_kernarg_size 88
  .amdhsa_user_sgpr_count 2
  .amdhsa_user_sgpr_kernarg_segment_ptr 1
  .amdhsa_system_sgpr_workgroup_id_x 1
.end_amdhsa_kernel
"""

def make_srd(E, d, base, size):
    E(f"s_mov_b32 s{d}, s{base}")
    E(f"s_and_b32 s{d+1}, s{base+1}, 0xffff")
    E(f"s_mov_b32 s{d+2}, {size}")
    E(f"s_mov_b32 s{d+3}, 0x00020000")

def gen_k1(E):
    name = "k1_proj_kernel"
    kernel_start(E, name)
    vm = VM(E)
    NS = 5; PD = int(os.environ.get("K1PD", "4"))
    SLOT = 28672; XB = 16384
    NST = 8
    S_X, S_W, S_WS, S_GW = 20, 24, 28, 36
    sW, sMT, sNT, sT0, sT1, sT2 = 40, 41, 42, 45, 46, 47
    sXM0, sWM0, sCOL, sROW, sROT = 48, 49, 51, 53, 55
    vLANE = 1
    vXD = 8
    vWD = 12
    vXA = 16
    vWA = 20
    vG = 22
    vGX = 24
    vXF = 48
    vWF = 56
    vACC = 80
    E("s_cmp_ge_u32 s2, 256")
    E("s_cbranch_scc1 K1_END")
    E("s_load_dwordx4 s[4:7], s[0:1], 0")
    E("s_load_dwordx2 s[12:13], s[0:1], 56")
    E("s_load_dwordx2 s[14:15], s[0:1], 80")
    E(f"v_and_b32 v{vLANE}, 63, v0")
    E("v_lshrrev_b32 v2, 6, v0")
    E("s_nop 0")
    E(f"v_readfirstlane_b32 s{sW}, v2")
    E(f"s_and_b32 s{sT0}, s2, 7")
    E(f"s_lshr_b32 s{sT1}, s2, 3")
    E(f"s_and_b32 s{sMT}, s{sT0}, 3")
    E(f"s_lshl_b32 s{sMT}, s{sMT}, 2")
    E(f"s_and_b32 s{sT2}, s{sT1}, 3")
    E(f"s_add_u32 s{sMT}, s{sMT}, s{sT2}")
    E(f"s_lshr_b32 s{sNT}, s{sT0}, 2")
    E(f"s_lshl_b32 s{sNT}, s{sNT}, 3")
    E(f"s_lshr_b32 s{sT2}, s{sT1}, 2")
    E(f"s_add_u32 s{sNT}, s{sNT}, s{sT2}")
    E(f"s_mul_i32 s{sCOL}, s{sNT}, 96")
    if os.environ.get("K1ROT", "0") == "1":
        E(f"s_lshl_b32 s{sROT}, s{sMT}, 1")
        E(f"s_add_u32 s{sROT}, s{sROT}, s{sNT}")
    else:
        E(f"s_add_u32 s{sROT}, s{sMT}, s{sNT}")
    for t in range(4):
        E(f"s_lshl_b32 s{sT0}, s{sW}, 5")
        E(f"s_add_u32 s{sT0}, s{sT0}, {8*t}")
        E(f"v_lshrrev_b32 v2, 3, v{vLANE}")
        E(f"v_add_u32 v2, s{sT0}, v2")
        E(f"v_lshrrev_b32 v3, 1, v2")
        E(f"v_and_b32 v3, 7, v3")
        E(f"v_and_b32 v4, 7, v{vLANE}")
        E(f"v_xor_b32 v3, v3, v4")
        E(f"s_lshl_b32 s{sT0}, s{sMT}, 7")
        E(f"v_add_u32 v2, s{sT0}, v2")
        E(f"v_lshlrev_b32 v2, 10, v2")
        E(f"v_lshl_add_u32 v{vXD+t}, v3, 4, v2")
    for t in range(3):
        E(f"s_mul_i32 s{sT0}, s{sW}, 192")
        E(f"s_add_u32 s{sT0}, s{sT0}, {64*t}")
        E(f"v_add_u32 v2, s{sT0}, v{vLANE}")
        E(f"v_mul_u32_u24 v3, 5462, v2")
        E(f"v_lshrrev_b32 v3, 16, v3")
        E(f"v_mul_u32_u24 v4, 12, v3")
        E(f"v_sub_u32 v4, v2, v4")
        E(f"v_mul_u32_u24 v3, 3072, v3")
        E(f"v_lshl_add_u32 v3, v4, 4, v3")
        E(f"s_lshl_b32 s{sT0}, s{sCOL}, 1")
        E(f"v_add_u32 v{vWD+t}, s{sT0}, v3")
    E(f"s_lshl_b32 s{sXM0}, s{sW}, 12")
    E(f"s_mul_i32 s{sWM0}, s{sW}, 3072")
    E(f"s_add_u32 s{sWM0}, s{sWM0}, {XB}")
    E(f"s_lshl_b32 s{sT0}, s{sW}, 5")
    E(f"s_lshl_b32 s{sROW}, s{sMT}, 7")
    E(f"s_add_u32 s{sROW}, s{sROW}, s{sT0}")
    E("s_waitcnt lgkmcnt(0)")
    E.stamp()
    make_srd(E, S_X, 4, 2048 * 1024)
    make_srd(E, S_W, 6, 512 * 3072)
    def dma(st, j):
        slot = st % NS
        E(f"s_add_u32 s{sT0}, s{sROT}, {st}")
        E(f"s_and_b32 s{sT0}, s{sT0}, 7")
        if j < 4:
            E(f"s_lshl_b32 s{sT0}, s{sT0}, 7")
            E(f"s_add_u32 m0, s{sXM0}, {slot*SLOT + j*1024}")
            E("s_nop 0")
            E(f"buffer_load_dwordx4 v{vXD+j}, s[{S_X}:{S_X+3}], s{sT0} offen lds")
        else:
            t = j - 4
            E(f"s_mul_i32 s{sT0}, s{sT0}, {64*3072}")
            E(f"s_add_u32 m0, s{sWM0}, {slot*SLOT + t*1024}")
            E("s_nop 0")
            E(f"buffer_load_dwordx4 v{vWD+t}, s[{S_W}:{S_W+3}], s{sT0} offen lds")
        vm.issue(("st", st))
    make_srd(E, S_GW, 12, 1024)
    E(f"s_lshl_b32 s{sT0}, s2, 3")
    E(f"s_lshl_b32 s{sT1}, s{sW}, 1")
    E(f"s_add_u32 s{sT0}, s{sT0}, s{sT1}")
    E(f"s_lshl_b32 s{sT0}, s{sT0}, 10")
    E(f"v_lshlrev_b32 v2, 4, v{vLANE}")
    E(f"buffer_load_dwordx4 v[{vGX}:{vGX+3}], v2, s[{S_X}:{S_X+3}], s{sT0} offen"); vm.issue("misc")
    E(f"buffer_load_dwordx4 v[{vGX+4}:{vGX+7}], v2, s[{S_X}:{S_X+3}], s{sT0} offen offset:1024"); vm.issue("misc")
    E(f"buffer_load_dwordx4 v[{vGX+8}:{vGX+11}], v2, s[{S_GW}:{S_GW+3}], 0 offen"); vm.issue("misc")
    if os.environ.get("K1PF", "0") == "1":
        E(f"s_lshr_b32 s{sT0}, s2, 3")
        E(f"s_lshl_b32 s{sT0}, s{sT0}, 2")
        E(f"s_add_u32 s{sT0}, s{sT0}, s{sW}")
        E(f"s_and_b32 s{sT1}, s2, 3")
        E(f"s_lshl_b32 s{sT1}, s{sT1}, 19")
        E(f"s_lshl_b32 s{sT2}, s{sT0}, 12")
        E(f"s_add_u32 s{sT1}, s{sT1}, s{sT2}")
        E(f"v_lshlrev_b32 v2, 4, v{vLANE}")
        for j in range(4):
            E(f"buffer_load_dwordx4 v[40:43], v2, s[{S_X}:{S_X+3}], s{sT1} offen offset:{1024*j}"); vm.issue("pf")
        E(f"s_bfe_u32 s{sT1}, s2, 0x10002")
        E(f"s_mul_i32 s{sT1}, s{sT1}, 1536")
        E(f"s_mul_i32 s{sT2}, s{sT0}, {4*3072}")
        E(f"s_add_u32 s{sT1}, s{sT1}, s{sT2}")
        for j in range(6):
            E(f"v_add_u32 v3, {64*j}, v{vLANE}")
            E(f"v_mul_u32_u24 v4, 683, v3")
            E(f"v_lshrrev_b32 v4, 16, v4")
            E(f"v_mul_u32_u24 v5, 96, v4")
            E(f"v_sub_u32 v5, v3, v5")
            E(f"v_mul_u32_u24 v4, 3072, v4")
            E(f"v_lshl_add_u32 v4, v5, 4, v4")
            E(f"buffer_load_dwordx4 v[44:47], v4, s[{S_W}:{S_W+3}], s{sT1} offen"); vm.issue("pf")
    P0 = int(os.environ.get("K1P0", "2"))
    for st in range(P0):
        for j in range(7):
            dma(st, j)
    make_srd(E, S_WS, 14, WS_SIZE)
    E.stamp()
    E(f"s_lshl_b32 s{sT0}, s{sW}, 5")
    E(f"v_and_b32 v2, 31, v{vLANE}")
    E(f"v_add_u32 v2, s{sT0}, v2")
    E(f"v_lshrrev_b32 v3, 1, v2")
    E(f"v_and_b32 v3, 7, v3")
    E(f"v_lshrrev_b32 v4, 5, v{vLANE}")
    E(f"v_lshlrev_b32 v2, 7, v2")
    for t in range(4):
        E(f"v_add_u32 v5, {2*t}, v4")
        E(f"v_xor_b32 v5, v5, v3")
        E(f"v_lshl_add_u32 v{vXA+t}, v5, 4, v2")
    E(f"v_lshrrev_b32 v2, 5, v{vLANE}")
    E(f"v_lshlrev_b32 v2, 3, v2")
    E(f"v_bfe_u32 v3, v{vLANE}, 2, 2")
    E(f"v_add_u32 v2, v2, v3")
    E(f"v_mul_u32_u24 v2, 192, v2")
    E(f"v_and_b32 v4, 3, v{vLANE}")
    E(f"v_lshl_add_u32 v2, v4, 3, v2")
    E(f"v_bfe_u32 v4, v{vLANE}, 4, 1")
    E(f"v_lshl_add_u32 v2, v4, 5, v2")
    E(f"v_add_u32 v{vWA}, {XB}, v2")
    for i in range(48):
        E(f"v_mov_b32 v{vACC+i}, 0")
    vm.wait("misc")
    w = vGX + 8; t0 = vGX + 12
    for r in range(2):
        a = vGX + 4 * r
        g = vG + r
        for d in range(4):
            E(f"v_lshlrev_b32 v{t0}, 16, v{a+d}")
            E(f"v_lshlrev_b32 v{t0+1}, 16, v{w+d}")
            E(f"v_and_b32 v{t0+2}, 0xffff0000, v{a+d}")
            E(f"v_and_b32 v{t0+3}, 0xffff0000, v{w+d}")
            E(f"v_mul_f32 v{t0}, v{t0}, v{t0+1}")
            E(f"v_mul_f32 v{t0+2}, v{t0+2}, v{t0+3}")
            E(f"v_cvt_pk_bf16_f32 v{t0}, v{t0}, v{t0+2}")
            E(f"v_lshlrev_b32 v{t0+1}, 16, v{t0}")
            E(f"v_and_b32 v{t0+2}, 0xffff0000, v{t0}")
            if d == 0:
                E(f"v_add_f32 v{g}, v{t0+1}, v{t0+2}")
            else:
                E(f"v_add_f32 v{g}, v{g}, v{t0+1}")
                E(f"v_add_f32 v{g}, v{g}, v{t0+2}")
    for m in (1, 2, 4, 8, 16, 32):
        E(f"v_xor_b32 v{t0}, {m}, v{vLANE}")
        E(f"v_lshlrev_b32 v{t0}, 2, v{t0}")
        E(f"ds_bpermute_b32 v{t0+1}, v{t0}, v{vG}")
        E(f"ds_bpermute_b32 v{t0+2}, v{t0}, v{vG+1}")
        E("s_waitcnt lgkmcnt(0)")
        E(f"v_add_f32 v{vG}, v{vG}, v{t0+1}")
        E(f"v_add_f32 v{vG+1}, v{vG+1}, v{t0+2}")
    E(f"v_cmp_eq_u32 vcc, 1, v{vLANE}")
    E("s_nop 1")
    E(f"v_cndmask_b32 v{vG}, v{vG}, v{vG+1}, vcc")
    E(f"v_cvt_pk_bf16_f32 v{vG}, v{vG}, v{vG}")
    E(f"v_lshlrev_b32 v{vG}, 16, v{vG}")
    E(f"v_mul_f32 v{vG}, {hex(f32bits(-LOG2E))}, v{vG}")
    E(f"v_exp_f32 v{vG}, v{vG}")
    E("s_nop 0")
    E(f"v_add_f32 v{vG}, 1.0, v{vG}")
    E(f"v_rcp_f32 v{vG}, v{vG}")
    E("s_nop 0")
    E(f"v_cvt_pk_bf16_f32 v{vG}, v{vG}, v{vG}")
    E(f"v_lshlrev_b32 v{vG}, 16, v{vG}")
    E.stamp()
    E(f"s_cmp_ge_u32 s{sCOL}, 1024")
    E("s_cbranch_scc1 K1_NNN")
    E(f"s_cmp_eq_u32 s{sCOL}, 960")
    E("s_cbranch_scc1 K1_TTN")
    E("s_branch K1_TTT")
    def read_list(t, buf):
        L = [f"ds_read_b128 v[{vXF+4*buf}:{vXF+4*buf+3}], v{vXA+t}"]
        for b in range(3):
            for e in range(2):
                off = (16 * t + 4 * e) * 192 + 64 * b
                d = vWF + 12 * buf + 4 * b + 2 * e
                L.append(f"ds_read_b64_tr_b16 v[{d}:{d+1}], v{vWA} offset:{off}")
        return L
    snap = vm.snap()
    def bump(st):
        delta = SLOT if (st % NS) != 0 else -(NS - 1) * SLOT
        for r in list(range(vXA, vXA + 4)) + [vWA]:
            if delta > 0:
                E(f"v_add_u32 v{r}, {delta}, v{r}")
            else:
                E(f"v_subrev_u32 v{r}, {-delta}, v{r}")
    def main_loop(pat):
        E.nstamp = 3
        vm.restore(snap)
        vm.wait(("st", 0))
        E("s_barrier")
        E.stamp()
        for l in read_list(0, 0): E(l)
        nxt_issue = P0
        pend = []
        while nxt_issue < PD:
            pend += [(nxt_issue, j) for j in range(7)]; nxt_issue += 1
        for st in range(NST):
            for t in range(4):
                buf = t & 1
                last = (st == NST - 1 and t == 3)
                if t == 3 and not last:
                    bump(st + 1)
                nxt = [] if last else read_list((t + 1) & 3, buf ^ 1)
                for l in nxt: E(l)
                E(f"s_waitcnt lgkmcnt({len(nxt)})")
                for b in range(3):
                    xf = f"v[{vXF+4*buf}:{vXF+4*buf+3}]"
                    wf = f"v[{vWF+12*buf+4*b}:{vWF+12*buf+4*b+3}]"
                    acc = f"v[{vACC+16*b}:{vACC+16*b+15}]"
                    if pat[b] == 'T':
                        E(f"v_mfma_f32_32x32x16_bf16 {acc}, {wf}, {xf}, {acc}")
                    else:
                        E(f"v_mfma_f32_32x32x16_bf16 {acc}, {xf}, {wf}, {acc}")
                    if pend and b < 2:
                        dma(*pend.pop(0))
                if t == 1 and st + 1 < NST:
                    while pend: dma(*pend.pop(0))
                    vm.wait(("st", st + 1))
                    E("s_barrier")
                    E.stamp()
                    if st + PD < NST:
                        pend = [(st + PD, j) for j in range(7)]
    for pat in ("TTT", "TTN", "NNN"):
        E.label(f"K1_{pat}")
        main_loop(pat)
        E("s_branch K1_EPI")
    E.label("K1_EPI")
    vR, vH, vT = 2, 3, 4
    E(f"v_and_b32 v{vR}, 31, v{vLANE}")
    E(f"v_lshrrev_b32 v{vH}, 5, v{vLANE}")
    E("s_nop 15")
    E.stamp()
    P = vXF
    for b in range(3):
        acc = vACC + 16 * b
        tag = f"{b}"
        E(f"s_add_u32 s{sT0}, s{sCOL}, {32*b}")
        E(f"s_lshr_b32 s{sT2}, s{sT0}, 9")
        E(f"s_and_b32 s{sT0}, s{sT0}, 511")
        E(f"s_lshr_b32 s{sT0}, s{sT0}, 4")
        E(f"s_cmp_eq_u32 s{sT2}, 1")
        E(f"s_cbranch_scc1 K1_EK{tag}")
        E(f"s_cmp_eq_u32 s{sT2}, 2")
        E(f"s_cbranch_scc1 K1_EV{tag}")
        for i in range(16):
            E(f"v_mul_f32 v{acc+i}, {hex(f32bits(QSCALE))}, v{acc+i}")
        for i in range(8):
            E(f"v_cvt_pk_bf16_f32 v{P+i}, v{acc+2*i}, v{acc+2*i+1}")
        E(f"v_add_u32 v{vT}, s{sROW}, v{vR}")
        E(f"v_lshlrev_b32 v{vT}, 5, v{vT}")
        E(f"v_lshl_add_u32 v{vT}, v{vH}, 4, v{vT}")
        E(f"s_lshl_b32 s{sT0}, s{sT0}, 16")
        E(f"s_add_u32 s{sT0}, s{sT0}, {WS_Q}")
        E(f"buffer_store_dwordx4 v[{P}:{P+3}], v{vT}, s[{S_WS}:{S_WS+3}], s{sT0} offen")
        E(f"s_add_u32 s{sT0}, s{sT0}, 65536")
        E(f"buffer_store_dwordx4 v[{P+4}:{P+7}], v{vT}, s[{S_WS}:{S_WS+3}], s{sT0} offen")
        E(f"s_branch K1_EN{tag}")
        E.label(f"K1_EK{tag}")
        for i in range(8):
            E(f"v_cvt_pk_bf16_f32 v{P+i}, v{acc+2*i}, v{acc+2*i+1}")
        E(f"v_lshlrev_b32 v{vT}, 4, v{vR}")
        E(f"v_lshl_add_u32 v{vT}, v{vH}, 9, v{vT}")
        E(f"s_lshl_b32 s{sT0}, s{sT0}, 16")
        E(f"s_lshl_b32 s{sT2}, s{sROW}, 5")
        E(f"s_add_u32 s{sT0}, s{sT0}, s{sT2}")
        E(f"s_add_u32 s{sT0}, s{sT0}, {WS_K}")
        E(f"buffer_store_dwordx4 v[{P}:{P+3}], v{vT}, s[{S_WS}:{S_WS+3}], s{sT0} offen")
        E(f"s_add_u32 s{sT0}, s{sT0}, 65536")
        E(f"buffer_store_dwordx4 v[{P+4}:{P+7}], v{vT}, s[{S_WS}:{S_WS+3}], s{sT0} offen")
        E(f"s_branch K1_EN{tag}")
        E.label(f"K1_EV{tag}")
        for i in range(8):
            E(f"v_cvt_pk_bf16_f32 v{P+i}, v{acc+2*i}, v{acc+2*i+1}")
        E(f"v_and_b32 v{vT}, 15, v{vR}")
        E(f"v_lshlrev_b32 v{vT}, 4, v{vT}")
        E(f"v_lshl_add_u32 v{vT}, v{vH}, 8, v{vT}")
        E(f"v_lshrrev_b32 v{vT+1}, 4, v{vR}")
        E(f"v_lshl_add_u32 v{vT}, v{vT+1}, 16, v{vT}")
        E(f"s_lshl_b32 s{sT0}, s{sT0}, 16")
        E(f"s_lshl_b32 s{sT2}, s{sROW}, 5")
        E(f"s_add_u32 s{sT0}, s{sT0}, s{sT2}")
        E(f"s_add_u32 s{sT0}, s{sT0}, {WS_V}")
        E(f"buffer_store_dwordx4 v[{P}:{P+3}], v{vT}, s[{S_WS}:{S_WS+3}], s{sT0} offen")
        E(f"buffer_store_dwordx4 v[{P+4}:{P+7}], v{vT}, s[{S_WS}:{S_WS+3}], s{sT0} offen offset:512")
        E.label(f"K1_EN{tag}")
        E("s_nop 1")
    E.nstamp = 12
    E.stamp()
    E.dump_stamps(S_WS, sW, 0)
    E(f"s_lshl_b32 s{sT0}, s2, 3")
    E(f"s_lshl_b32 s{sT1}, s{sW}, 1")
    E(f"s_add_u32 s{sT0}, s{sT0}, s{sT1}")
    E(f"s_lshl_b32 s{sT0}, s{sT0}, 2")
    E(f"s_add_u32 s{sT0}, s{sT0}, {WS_G}")
    E(f"v_lshlrev_b32 v2, 2, v{vLANE}")
    E(f"v_cmp_gt_u32 vcc, 2, v{vLANE}")
    E("s_and_saveexec_b64 s[64:65], vcc")
    E(f"buffer_store_dword v{vG}, v2, s[{S_WS}:{S_WS+3}], s{sT0} offen")
    E("s_mov_b64 exec, s[64:65]")
    E.label("K1_END")
    E("s_endpgm")
    return name, 128

def gen_k2_gwave(E, S_WS, sW, sH, sQB):
    vm = VM(E)
    S_X, S_W1, S_B1 = 24, 28, 32
    sT0, sT1, sCOL, sROW, sM0, sGW = 43, 44, 45, 46, 47, 48
    vLANE = 1
    vWD = 4
    vXD = 7
    vWA = 8
    vBIAS = 9
    vT = 12
    vXF = 16
    vWF = 32
    vB = 44
    vACC = 64
    vX = 112
    GBASE = 131072; GSZ = 6144; SL = 3072
    E.label("K2_G")
    E("s_load_dwordx2 s[4:5], s[0:1], 0")
    E("s_load_dwordx4 s[8:11], s[0:1], 32")
    E(f"s_sub_u32 s{sGW}, s{sW}, 8")
    E(f"s_lshl_b32 s{sT0}, s{sH}, 2")
    E(f"s_add_u32 s{sT0}, s{sT0}, s{sGW}")
    E(f"s_and_b32 s{sT1}, s{sT0}, 7")
    E(f"s_lshl_b32 s{sROW}, s{sQB}, 3")
    E(f"s_add_u32 s{sROW}, s{sROW}, s{sT1}")
    E(f"s_lshl_b32 s{sROW}, s{sROW}, 5")
    E(f"s_lshr_b32 s{sT1}, s{sT0}, 3")
    E(f"s_mul_i32 s{sCOL}, s{sT1}, 96")
    E(f"s_cmp_lt_u32 s{sT1}, {0 if os.environ.get('XG','')=='off' else 15}")
    E("s_cbranch_scc1 K2_GGO")
    UPF = os.environ.get("K2UP", "0") == "1"
    for i in range(2 if UPF else 4):
        E("s_barrier")
    E("s_endpgm")
    E.label("K2_GGO")
    E(f"s_mul_i32 s{sM0}, s{sGW}, {GSZ}")
    E(f"s_add_u32 s{sM0}, s{sM0}, {GBASE}")
    for t in range(3):
        E(f"v_add_u32 v2, {64*t}, v{vLANE}")
        E(f"v_mul_u32_u24 v3, 5462, v2")
        E(f"v_lshrrev_b32 v3, 16, v3")
        E(f"v_mul_u32_u24 v12, 12, v3")
        E(f"v_sub_u32 v12, v2, v12")
        E(f"v_mul_u32_u24 v3, 2752, v3")
        E(f"v_lshl_add_u32 v3, v12, 4, v3")
        E(f"s_lshl_b32 s{sT0}, s{sCOL}, 1")
        E(f"v_add_u32 v{vWD+t}, s{sT0}, v3")
    E(f"v_and_b32 v2, 31, v{vLANE}")
    E(f"v_add_u32 v2, s{sROW}, v2")
    E(f"v_lshlrev_b32 v2, 10, v2")
    E(f"v_lshrrev_b32 v3, 5, v{vLANE}")
    E(f"v_lshl_add_u32 v{vXD}, v3, 4, v2")
    E(f"v_lshrrev_b32 v2, 5, v{vLANE}")
    E(f"v_lshlrev_b32 v2, 3, v2")
    E(f"v_bfe_u32 v3, v{vLANE}, 2, 2")
    E(f"v_add_u32 v2, v2, v3")
    E(f"v_mul_u32_u24 v2, 192, v2")
    E(f"v_and_b32 v3, 3, v{vLANE}")
    E(f"v_lshl_add_u32 v2, v3, 3, v2")
    E(f"v_bfe_u32 v3, v{vLANE}, 4, 1")
    E(f"v_lshl_add_u32 v2, v3, 5, v2")
    E(f"v_add_u32 v{vWA}, s{sM0}, v2")
    E("s_waitcnt lgkmcnt(0)")
    make_srd(E, S_X, 4, 2048 * 1024)
    make_srd(E, S_W1, 8, 512 * 2752)
    make_srd(E, S_B1, 10, 1376 * 2)
    def dmaW(c):
        E(f"s_mov_b32 s{sT0}, {c*16*2752}")
        for t in range(3):
            E(f"s_add_u32 m0, s{sM0}, {(c%2)*SL + t*1024}")
            E("s_nop 0")
            E(f"buffer_load_dwordx4 v{vWD+t}, s[{S_W1}:{S_W1+3}], s{sT0} offen lds"); vm.issue(("w", c))
    def ldX(c):
        d = vXF + 4 * (c % 4)
        E(f"buffer_load_dwordx4 v[{d}:{d+3}], v{vXD}, s[{S_X}:{S_X+3}], 0 offen offset:{c*32}"); vm.issue(("x", c))
    E(f"v_lshlrev_b32 v2, 1, v{vLANE}")
    E(f"v_cmp_gt_u32 vcc, 32, v{vLANE}")
    E(f"v_mov_b32 v3, 0x7fff0000")
    E(f"s_lshl_b32 s{sT0}, s{sCOL}, 1")
    E(f"v_cndmask_b32 v2, v3, v2, vcc")
    for b in range(3):
        E(f"buffer_load_ushort v{vBIAS+b}, v2, s[{S_B1}:{S_B1+3}], s{sT0} offen offset:{64*b}"); vm.issue("b")
    ldX(0); dmaW(0); ldX(1); dmaW(1); ldX(2); ldX(3)
    for i in range(48):
        E(f"v_mov_b32 v{vACC+i}, 0")
    for c in range(32):
        if c in ((0, 2) if UPF else (0, 2, 6, 12)):
            E("s_barrier")
        iw = max(i for i, t in enumerate(vm.ops) if t in (("w", c), ("x", c)))
        E(f"s_waitcnt vmcnt({len(vm.ops) - 1 - iw})")
        for b in range(3):
            for e in range(2):
                d = vWF + 4 * b + 2 * e
                E(f"ds_read_b64_tr_b16 v[{d}:{d+1}], v{vWA} offset:{(c%2)*SL + 4*e*192 + 64*b}")
        E("s_waitcnt lgkmcnt(0)")
        xf = vXF + 4 * (c % 4)
        for b in range(3):
            acc = f"v[{vACC+16*b}:{vACC+16*b+15}]"
            E(f"v_mfma_f32_32x32x16_bf16 {acc}, v[{vWF+4*b}:{vWF+4*b+3}], v[{xf}:{xf+3}], {acc}")
        if c + 2 < 32: dmaW(c + 2)
        if c + 4 < 32: ldX(c + 4)
    B = vB; X = vX
    E(f"v_cmp_gt_u32 vcc, 32, v{vLANE}")
    E(f"v_mov_b32 v{B}, 0x3f80")
    for i in range(1, 4):
        E(f"v_mov_b32 v{B+i}, 0")
    E(f"v_cndmask_b32 v{B}, 0, v{B}, vcc")
    for b in range(3):
        for i in range(1, 4):
            E(f"v_mov_b32 v{B+4+4*b+i}, 0")
        E(f"v_mov_b32 v{B+4+4*b}, v{vBIAS+b}")
    E("s_nop 1")
    for b in range(3):
        acc = f"v[{vACC+16*b}:{vACC+16*b+15}]"
        E(f"v_mfma_f32_32x32x16_bf16 {acc}, v[{B+4+4*b}:{B+7+4*b}], v[{B}:{B+3}], {acc}")
    E(f"v_and_b32 v2, 31, v{vLANE}")
    E(f"v_lshrrev_b32 v3, 5, v{vLANE}")
    E(f"v_add_u32 v{vT}, s{sROW}, v2")
    E(f"v_mul_u32_u24 v{vT}, 2752, v{vT}")
    E(f"v_lshl_add_u32 v{vT}, v3, 4, v{vT}")
    E(f"s_mov_b32 s60, {hex(f32bits(LOG2E))}")
    E(f"s_mov_b32 s61, s60")
    E(f"s_mov_b32 s62, 2.0")
    E(f"s_mov_b32 s63, 2.0")
    E("s_nop 15")
    for b in range(3):
        acc = vACC + 16 * b
        E(f"s_add_u32 s{sT0}, s{sCOL}, {32*b}")
        E(f"s_cmp_ge_u32 s{sT0}, 1376")
        E(f"s_cbranch_scc1 K2_END")
        E(f"s_lshl_b32 s{sT0}, s{sT0}, 1")
        E(f"s_add_u32 s{sT0}, s{sT0}, {WS_ACT}")
        for i in range(0, 16, 2):
            E(f"v_pk_mul_f32 v[{X+i}:{X+i+1}], v[{acc+i}:{acc+i+1}], s[60:61]")
        for i in range(16):
            E(f"v_min_f32 v{X+i}, 0x42200000, v{X+i}")
        for i in range(16):
            E(f"v_exp_f32 v{X+i}, v{X+i}")
        for i in range(0, 16, 2):
            E(f"v_pk_add_f32 v[{B+i}:{B+i+1}], v[{X+i}:{X+i+1}], s[62:63]")
        for i in range(0, 16, 2):
            E(f"v_pk_mul_f32 v[{X+i}:{X+i+1}], v[{X+i}:{X+i+1}], v[{B+i}:{B+i+1}]")
        for i in range(0, 16, 2):
            E(f"v_pk_add_f32 v[{B+i}:{B+i+1}], v[{X+i}:{X+i+1}], s[62:63]")
        for i in range(16):
            E(f"v_rcp_f32 v{B+i}, v{B+i}")
        for i in range(0, 16, 2):
            E(f"v_pk_mul_f32 v[{X+i}:{X+i+1}], v[{X+i}:{X+i+1}], v[{acc+i}:{acc+i+1}]")
        for i in range(0, 16, 2):
            E(f"v_pk_mul_f32 v[{X+i}:{X+i+1}], v[{X+i}:{X+i+1}], v[{B+i}:{B+i+1}]")
        for i in range(8):
            E(f"v_cvt_pk_bf16_f32 v{B+i}, v{X+2*i}, v{X+2*i+1}")
        E(f"buffer_store_dwordx4 v[{B}:{B+3}], v{vT}, s[{S_WS}:{S_WS+3}], s{sT0} offen")
        E(f"buffer_store_dwordx4 v[{B+4}:{B+7}], v{vT}, s[{S_WS}:{S_WS+3}], s{sT0} offen offset:32")
        E("s_nop 1")
    E("s_branch K2_END")

def gen_k2(E):
    name = "k2_attn_kernel"
    kernel_start(E, name)
    S_WS = 20
    sW, sH, sQB, sT0, sT1, sPASS, sIT = 40, 41, 42, 43, 44, 45, 46
    vLANE = 1
    vKA, vVA = 4, 5
    vDMA = 6
    vQ = 8
    vKF = 12
    vVF = 20
    vP = 36
    vS = 48
    vC = 80
    vO = 96
    vT = 112
    E("s_cmp_ge_u32 s2, 256")
    E("s_cbranch_scc1 K2_END")
    E("s_load_dwordx2 s[14:15], s[0:1], 80")
    E(f"v_and_b32 v{vLANE}, 63, v0")
    E("v_lshrrev_b32 v2, 6, v0")
    E("s_nop 0")
    E(f"v_readfirstlane_b32 s{sW}, v2")
    if os.environ.get("K2MAP", "0") == "0":
        E(f"s_and_b32 s{sQB}, s2, 7")
        E(f"s_lshr_b32 s{sH}, s2, 3")
    else:
        E(f"s_and_b32 s{sT0}, s2, 7")
        E(f"s_lshl_b32 s{sH}, s{sT0}, 2")
        E(f"s_lshr_b32 s{sT0}, s2, 6")
        E(f"s_add_u32 s{sH}, s{sH}, s{sT0}")
        E(f"s_lshr_b32 s{sQB}, s2, 3")
        E(f"s_and_b32 s{sQB}, s{sQB}, 7")
    E("s_load_dwordx2 s[4:5], s[0:1], 16")
    E("s_load_dwordx2 s[6:7], s[0:1], 48")
    E("s_waitcnt lgkmcnt(0)")
    E.stamp()
    if DIAG:
        E("s_memrealtime s[96:97]")
        E("s_waitcnt lgkmcnt(0)")
    make_srd(E, S_WS, 14, WS_SIZE)
    E(f"s_cmp_ge_u32 s{sW}, 8")
    E("s_cbranch_scc1 K2_G")
    if os.environ.get("XG", "") == "prio":
        E("s_setprio 2")
    make_srd(E, 24, 4, 512 * 1024)
    make_srd(E, 28, 6, 1376 * 1024)
    E(f"v_and_b32 v2, 31, v{vLANE}")
    E(f"v_lshrrev_b32 v3, 5, v{vLANE}")
    E(f"v_lshlrev_b32 v2, 5, v2")
    E(f"v_lshl_add_u32 v2, v3, 4, v2")
    E(f"s_lshl_b32 s{sT0}, s{sH}, 11")
    E(f"s_lshl_b32 s{sT1}, s{sQB}, 8")
    E(f"s_add_u32 s{sT0}, s{sT0}, s{sT1}")
    E(f"s_lshl_b32 s{sT1}, s{sW}, 5")
    E(f"s_add_u32 s{sT0}, s{sT0}, s{sT1}")
    E(f"s_lshl_b32 s{sT0}, s{sT0}, 5")
    E(f"s_add_u32 s{sT0}, s{sT0}, {WS_Q}")
    E(f"buffer_load_dwordx4 v[{vQ}:{vQ+3}], v2, s[{S_WS}:{S_WS+3}], s{sT0} offen")
    E(f"v_lshlrev_b32 v{vDMA}, 4, v{vLANE}")
    E(f"s_lshl_b32 s{sT1}, s{sW}, 10")
    E(f"s_lshl_b32 s{sT0}, s{sH}, 16")
    E(f"s_add_u32 s{sT0}, s{sT0}, s{sT1}")
    E(f"s_mov_b32 s48, s{sT1}")
    E(f"s_add_u32 s49, s{sT0}, {WS_K}")
    def dma_chunk():
        E(f"s_mov_b32 m0, s48")
        E(f"s_add_u32 s50, s49, {WS_V - WS_K}")
        E(f"buffer_load_dwordx4 v{vDMA}, s[{S_WS}:{S_WS+3}], s49 offen lds")
        E(f"s_add_u32 m0, s48, 65536")
        E(f"s_add_u32 s48, s48, 8192")
        E(f"buffer_load_dwordx4 v{vDMA}, s[{S_WS}:{S_WS+3}], s50 offen lds")
        E(f"s_add_u32 s49, s49, 8192")
    UPF = os.environ.get("K2UP", "0") == "1"
    for _ in range(8 if UPF else 1):
        dma_chunk()
    E(f"v_and_b32 v2, 31, v{vLANE}")
    E(f"v_cmp_eq_u32 vcc, 16, v2")
    E(f"v_mov_b32 v3, 0x3f803f80")
    E("s_nop 0")
    E(f"v_cndmask_b32 v3, 0, v3, vcc")
    for i in range(16):
        E(f"v_mov_b32 v{vVF+i}, v3")
    E("s_mov_b32 s52, 0x0000ffff")
    E("s_mov_b32 s53, 0x0000ffff")
    E(f"s_mov_b32 s{sPASS}, 0")
    E.stamp()
    E("s_waitcnt vmcnt(14)" if UPF else "s_waitcnt vmcnt(0)")
    E("s_barrier")
    E.stamp()
    E(f"v_lshlrev_b32 v{vKA}, 4, v{vLANE}")
    E(f"ds_read_b128 v[{vKF}:{vKF+3}], v{vKA}")
    E("s_waitcnt lgkmcnt(0)")
    E(f"v_mfma_f32_32x32x16_bf16 v[{vS}:{vS+15}], v[{vKF}:{vKF+3}], v[{vQ}:{vQ+3}], 0")
    E("s_nop 15")
    def rowmax16(src, dst):
        E(f"v_max3_f32 v{dst}, v{src}, v{src+1}, v{src+2}")
        for i in range(3, 15, 2):
            E(f"v_max3_f32 v{dst}, v{dst}, v{src+i}, v{src+i+1}")
        E(f"v_max_f32 v{dst}, v{dst}, v{src+15}")
    def cross_half_max(reg):
        E(f"v_mov_b32 v{vT+1}, v{reg}")
        E(f"v_mov_b32 v{vT+2}, v{reg}")
        E("s_nop 1")
        E(f"v_permlane32_swap_b32 v{vT+1}, v{vT+2}")
        E("s_nop 1")
        E(f"v_max_f32 v{reg}, v{vT+1}, v{vT+2}")
    rowmax16(vS, vT)
    cross_half_max(vT)
    E.label("K2_RUN")
    for i in range(16):
        E(f"v_sub_f32 v{vC+i}, 0, v{vT}")
    for i in range(16):
        E(f"v_mov_b32 v{vO+i}, 0")
    E(f"v_lshlrev_b32 v{vKA}, 4, v{vLANE}")
    E(f"v_and_b32 v2, 31, v{vLANE}")
    E(f"v_lshrrev_b32 v3, 5, v{vLANE}")
    E(f"v_lshlrev_b32 v2, 4, v2")
    E(f"v_lshl_add_u32 v2, v3, 8, v2")
    E(f"v_add_u32 v{vVA}, 65536, v2")
    X_NOLDS = int(os.environ.get("X_NOLDS", "0"))
    X_NOEXEC = int(os.environ.get("X_NOEXEC", "0"))
    def rdK(buf, tile_off):
        if X_NOLDS: return
        E(f"ds_read_b128 v[{vKF+4*buf}:{vKF+4*buf+3}], v{vKA} offset:{tile_off*1024}")
    def rdV(buf, tile_off):
        if X_NOLDS: return
        if not X_NOEXEC: E("s_mov_b64 exec, s[52:53]")
        E(f"ds_read_b128 v[{vVF+8*buf}:{vVF+8*buf+3}], v{vVA} offset:{tile_off*1024}")
        E(f"ds_read_b128 v[{vVF+8*buf+4}:{vVF+8*buf+7}], v{vVA} offset:{tile_off*1024+512}")
        if not X_NOEXEC: E("s_mov_b64 exec, -1")
    def qk(sbuf, kbuf):
        E(f"v_mfma_f32_32x32x16_bf16 v[{vS+16*sbuf}:{vS+16*sbuf+15}], v[{vKF+4*kbuf}:{vKF+4*kbuf+3}], v[{vQ}:{vQ+3}], v[{vC}:{vC+15}]")
    rdK(0, 0); rdK(1, 1); rdV(0, 0)
    E("s_waitcnt lgkmcnt(3)")
    qk(0, 0)
    for i in range(4, 8):
        E(f"v_mov_b32 v{vP+i}, 0")
    def pv(vbuf, half2, preg):
        E(f"v_mfma_f32_32x32x16_bf16 v[{vO}:{vO+15}], v[{vVF+8*vbuf+4*half2}:{vVF+8*vbuf+4*half2+3}], v[{preg}:{preg+3}], v[{vO}:{vO+15}]")
    loopid = [0]
    def loop(n, with_dma):
        lid = loopid[0]; loopid[0] += 1
        E(f"s_mov_b32 s{sIT}, {-n & 0xffffffff}")
        E.raw(".p2align 3")
        E.label(f"K2_LOOP{lid}")
        if with_dma:
            dma_chunk()
            E("s_nop 0")
        LV = os.environ.get("LV", "3")
        for half in range(2):
            X = half; Y = half ^ 1
            sx = vS + 16 * X
            def ex(lo, hi):
                for i in range(lo, hi): E(f"v_exp_f32 v{sx+i}, v{sx+i}")
            def cv(lo, hi):
                for i in range(lo, hi): E(f"v_cvt_pk_bf16_f32 v{vP+i}, v{sx+2*i}, v{sx+2*i+1}")
            def rv():
                E(f"ds_read_b128 v[{vVF+8*Y}:{vVF+8*Y+3}], v{vVA} offset:{(half+1)*1024}")
                E(f"ds_read_b128 v[{vVF+8*Y+4}:{vVF+8*Y+7}], v{vVA} offset:{(half+1)*1024+512}")
            E("s_waitcnt lgkmcnt(2)")
            ex(0, 1)
            pv(Y, 1, vP + 4)
            if LV == "0":
                qk(Y, Y); rdK(X, half + 2); ex(1, 8)
                E("s_mov_b64 exec, s[52:53]"); rv(); E("s_mov_b64 exec, -1")
                E("s_waitcnt lgkmcnt(3)")
                cv(0, 4); ex(8, 10); pv(X, 0, vP); ex(10, 16); cv(4, 8)
            elif LV == "1":
                ex(1, 7); qk(Y, Y); rdK(X, half + 2); ex(7, 8)
                E("s_mov_b64 exec, s[52:53]"); rv(); E("s_mov_b64 exec, -1")
                E("s_waitcnt lgkmcnt(3)")
                cv(0, 4); ex(8, 10); pv(X, 0, vP); ex(10, 16); cv(4, 8)
            elif LV == "2":
                ex(1, 3); cv(0, 1); ex(3, 5); cv(1, 2); ex(5, 7); qk(Y, Y); rdK(X, half + 2); cv(2, 3); ex(7, 8)
                E("s_mov_b64 exec, s[52:53]"); rv(); E("s_mov_b64 exec, -1")
                E("s_waitcnt lgkmcnt(3)")
                cv(3, 4); ex(8, 10); pv(X, 0, vP); ex(10, 12); cv(4, 5); ex(12, 14); cv(5, 6); ex(14, 16); cv(6, 8)
            elif LV == "3":
                ex(1, 5); qk(Y, Y); rdK(X, half + 2); ex(5, 8)
                E("s_mov_b64 exec, s[52:53]"); rv(); E("s_mov_b64 exec, -1")
                E("s_waitcnt lgkmcnt(3)")
                cv(0, 4); ex(8, 12); pv(X, 0, vP); ex(12, 16); cv(4, 8)
        E(f"v_add_u32 v{vKA}, 2048, v{vKA}")
        E(f"v_add_u32 v{vVA}, 2048, v{vVA}")
        E(f"s_add_u32 s{sIT}, s{sIT}, 1")
        E(f"s_cbranch_scc0 K2_LOOP{lid}")
    E(f"s_cmp_lg_u32 s{sPASS}, 0")
    E("s_cbranch_scc1 K2_PASS1")
    loop(3, True)
    E.stamp()
    E("s_waitcnt vmcnt(4)")
    E("s_barrier")
    E.stamp()
    loop(4, True)
    E("s_waitcnt vmcnt(8)")
    E("s_barrier")
    loop(8, False)
    E("s_waitcnt vmcnt(0)")
    E("s_barrier")
    E(f"s_lshl_b32 s58, s{sH}, 3")
    E(f"s_add_u32 s58, s58, s{sW}")
    E(f"s_lshl_b32 s59, s58, 11")
    for j in range(2):
        E(f"buffer_load_dwordx4 v[124:127], v{vDMA}, s[24:27], s59 offen offset:{1024*j}")
    E(f"s_mul_i32 s59, s58, 5504")
    for j in range(3):
        E(f"buffer_load_dwordx4 v[124:127], v{vDMA}, s[28:31], s59 offen offset:{1024*j}")
    E(f"s_add_u32 s59, s59, 3072")
    for j in range(3):
        E(f"buffer_load_dwordx4 v[124:127], v{vDMA}, s[28:31], s59 offen offset:{1024*j}")
    loop(17, False)
    E("s_branch K2_TAIL")
    E.label("K2_PASS1")
    loop(32, False)
    E.label("K2_TAIL")
    E("s_nop 1")
    pv(1, 1, vP + 4)
    E("s_waitcnt lgkmcnt(0)")
    E("s_nop 15")
    E.stamp()
    E(f"v_mov_b32 v{vT+1}, v{vO+8}")
    E(f"v_mov_b32 v{vT+2}, v{vO+8}")
    E("s_nop 1")
    E(f"v_permlane32_swap_b32 v{vT+1}, v{vT+2}")
    E(f"s_cmp_lg_u32 s{sPASS}, 0")
    E("s_cbranch_scc1 K2_FIN")
    E(f"v_max3_f32 v{vT+3}, |v{vO}|, |v{vO+1}|, |v{vO+2}|")
    E(f"v_max3_f32 v{vT+3}, v{vT+3}, |v{vO+3}|, |v{vO+4}|")
    E(f"v_max3_f32 v{vT+3}, v{vT+3}, |v{vO+5}|, |v{vO+6}|")
    E(f"v_max_f32 v{vT+3}, v{vT+3}, |v{vO+7}|")
    E(f"s_mov_b32 s54, 0x5d800000")
    E(f"s_mov_b32 s55, 0x7f000000")
    E(f"v_cmp_nlt_f32 vcc, v{vT+1}, s54")
    E(f"v_cmp_nlt_f32 s[56:57], v{vT+3}, s55")
    E("s_nop 1")
    E("s_or_b64 vcc, vcc, s[56:57]")
    E("s_cbranch_vccz K2_FIN")
    E(f"v_lshlrev_b32 v{vKA}, 4, v{vLANE}")
    E(f"v_mov_b32 v{vT}, 0xff800000")
    E(f"s_mov_b32 s{sIT}, 0")
    E.label("K2_MAXLOOP")
    E(f"ds_read_b128 v[{vKF}:{vKF+3}], v{vKA}")
    E("s_waitcnt lgkmcnt(0)")
    E(f"v_mfma_f32_32x32x16_bf16 v[{vS}:{vS+15}], v[{vKF}:{vKF+3}], v[{vQ}:{vQ+3}], 0")
    E("s_nop 15")
    for i in range(0, 16, 2):
        E(f"v_max3_f32 v{vT}, v{vT}, v{vS+i}, v{vS+i+1}")
    E(f"v_add_u32 v{vKA}, 1024, v{vKA}")
    E(f"s_add_u32 s{sIT}, s{sIT}, 1")
    E(f"s_cmp_lt_u32 s{sIT}, 64")
    E("s_cbranch_scc1 K2_MAXLOOP")
    cross_half_max(vT)
    E(f"s_mov_b32 s{sPASS}, 1")
    E("s_branch K2_RUN")
    E.label("K2_FIN")
    E(f"v_rcp_f32 v{vT+1}, v{vT+1}")
    E("s_nop 0")
    for i in range(8):
        E(f"v_mul_f32 v{vO+i}, v{vO+i}, v{vT+1}")
    for i in range(4):
        E(f"v_cvt_pk_bf16_f32 v{vP+i}, v{vO+2*i}, v{vO+2*i+1}")
    E(f"v_and_b32 v2, 31, v{vLANE}")
    E(f"v_lshrrev_b32 v3, 5, v{vLANE}")
    E(f"v_lshlrev_b32 v2, 10, v2")
    E(f"v_lshl_add_u32 v2, v3, 4, v2")
    E(f"s_lshl_b32 s{sT0}, s{sQB}, 8")
    E(f"s_lshl_b32 s{sT1}, s{sW}, 5")
    E(f"s_add_u32 s{sT0}, s{sT0}, s{sT1}")
    E(f"s_lshl_b32 s{sT0}, s{sT0}, 10")
    E(f"s_lshl_b32 s{sT1}, s{sH}, 5")
    E(f"s_add_u32 s{sT0}, s{sT0}, s{sT1}")
    E(f"s_add_u32 s{sT0}, s{sT0}, {WS_O}")
    E(f"buffer_store_dwordx4 v[{vP}:{vP+3}], v2, s[{S_WS}:{S_WS+3}], s{sT0} offen")
    E.stamp()
    if DIAG:
        E.rstamp()
        E(f"s_mov_b32 s{70+2*E.nstamp}, s96")
        E.nstamp += 1
    E.dump_stamps(S_WS, sW, 1)
    E.label("K2_END")
    E("s_endpgm")
    gen_k2_gwave(E, S_WS, sW, sH, sQB)
    return name, 128

def gen_k3(E):
    name = "k3_out_kernel"
    kernel_start(E, name)
    vm = VM(E)
    NS = 9; SLOT = 16384; AB = 8192
    S_WS, S_WO, S_W2, S_OUT = 20, 24, 28, 32
    sW, sMT, sNT, sT0, sT1, sAM0, sBM0, sROW, sKH, sWQ = 40, 41, 42, 43, 44, 45, 46, 47, 48, 49
    vLANE = 1
    vAD1 = 8
    vAD2 = 9
    vBD = 10
    vAA = 12
    vBA = 14
    vG = 15
    vAF = 24
    vBF = 32
    vACC1 = 48
    vACC2 = 64
    vT = 80
    E("s_cmp_ge_u32 s2, 256")
    E("s_cbranch_scc1 K3_END")
    E("s_load_dwordx2 s[4:5], s[0:1], 16")
    E("s_load_dwordx2 s[6:7], s[0:1], 48")
    E("s_load_dwordx2 s[8:9], s[0:1], 64")
    E("s_load_dwordx2 s[14:15], s[0:1], 80")
    E(f"v_and_b32 v{vLANE}, 63, v0")
    E("v_lshrrev_b32 v2, 6, v0")
    E("s_nop 0")
    E(f"v_readfirstlane_b32 s{sW}, v2")
    E(f"s_and_b32 s{sT0}, s2, 7")
    E(f"s_lshr_b32 s{sT1}, s2, 3")
    E(f"s_lshl_b32 s{sMT}, s{sT0}, 2")
    E(f"s_and_b32 s{sT0}, s{sT1}, 3")
    E(f"s_add_u32 s{sMT}, s{sMT}, s{sT0}")
    E(f"s_lshr_b32 s{sNT}, s{sT1}, 2")
    E(f"s_lshr_b32 s{sKH}, s{sW}, 2")
    E(f"s_and_b32 s{sWQ}, s{sW}, 3")
    E(f"s_lshl_b32 s{sT0}, s{sW}, 3")
    E(f"v_lshrrev_b32 v2, 3, v{vLANE}")
    E(f"v_add_u32 v2, s{sT0}, v2")
    E(f"v_lshrrev_b32 v3, 1, v2")
    E(f"v_and_b32 v3, 7, v3")
    E(f"v_and_b32 v4, 7, v{vLANE}")
    E(f"v_xor_b32 v3, v3, v4")
    E(f"s_lshl_b32 s{sT0}, s{sMT}, 6")
    E(f"v_add_u32 v5, s{sT0}, v2")
    E(f"v_lshlrev_b32 v6, 10, v5")
    E(f"v_lshl_add_u32 v6, v3, 4, v6")
    E(f"v_add_u32 v{vAD1}, {WS_O}, v6")
    E(f"v_mul_u32_u24 v6, 2752, v5")
    E(f"v_lshl_add_u32 v6, v3, 4, v6")
    E(f"v_add_u32 v{vAD2}, {WS_ACT}, v6")
    E(f"v_lshlrev_b32 v3, 1, v2")
    E(f"v_and_b32 v3, 4, v3")
    E(f"v_xor_b32 v3, v3, v4")
    E(f"v_lshlrev_b32 v2, 10, v2")
    E(f"v_lshl_add_u32 v2, v3, 4, v2")
    E(f"s_lshl_b32 s{sT0}, s{sNT}, 7")
    E(f"v_add_u32 v{vBD}, s{sT0}, v2")
    E(f"s_lshl_b32 s{sAM0}, s{sW}, 10")
    E(f"s_add_u32 s{sBM0}, s{sAM0}, {AB}")
    E("s_waitcnt lgkmcnt(0)")
    E.stamp()
    make_srd(E, S_WS, 14, WS_SIZE)
    make_srd(E, S_WO, 4, 512 * 1024)
    make_srd(E, S_W2, 6, 1376 * 1024)
    make_srd(E, S_OUT, 8, 2048 * 1024)
    NST = 30
    def issue_stage(st):
        slot = st % NS
        if st < 8:
            ad, bs, ka = vAD1, S_WO, st
        else:
            ad, bs, ka = vAD2, S_W2, st - 8
        E(f"s_mov_b32 s{sT0}, {ka*128}")
        E(f"s_add_u32 m0, s{sAM0}, {slot*SLOT}")
        E("s_nop 0")
        E(f"buffer_load_dwordx4 v{ad}, s[{S_WS}:{S_WS+3}], s{sT0} offen lds"); vm.issue(st)
        E(f"s_mov_b32 s{sT0}, {ka*65536}")
        E(f"s_add_u32 m0, s{sBM0}, {slot*SLOT}")
        E("s_nop 0")
        E(f"buffer_load_dwordx4 v{vBD}, s[{bs}:{bs+3}], s{sT0} offen lds"); vm.issue(st)
    PD = NS - 1
    P0 = 3
    for st in range(P0):
        issue_stage(st)
    nxt_issue = P0
    E(f"s_and_b32 s{sT0}, s{sWQ}, 1")
    E(f"s_lshl_b32 s{sT0}, s{sT0}, 5")
    E(f"s_lshl_b32 s{sT1}, s{sMT}, 6")
    E(f"s_add_u32 s{sROW}, s{sT0}, s{sT1}")
    E(f"s_lshl_b32 s{sT0}, s{sROW}, 2")
    E(f"s_add_u32 s{sT0}, s{sT0}, {WS_G}")
    E(f"v_and_b32 v2, 31, v{vLANE}")
    E(f"v_lshlrev_b32 v2, 2, v2")
    E(f"buffer_load_dword v{vG}, v2, s[{S_WS}:{S_WS+3}], s{sT0} offen"); vm.issue("g")
    E.stamp()
    E(f"s_and_b32 s{sT0}, s{sWQ}, 1")
    E(f"s_lshl_b32 s{sT0}, s{sT0}, 5")
    E(f"v_and_b32 v2, 31, v{vLANE}")
    E(f"v_add_u32 v2, s{sT0}, v2")
    E(f"v_lshrrev_b32 v3, 1, v2")
    E(f"v_and_b32 v3, 7, v3")
    E(f"v_lshrrev_b32 v4, 5, v{vLANE}")
    E(f"v_lshlrev_b32 v2, 7, v2")
    E(f"s_lshl_b32 s{sT0}, s{sKH}, 2")
    E(f"v_add_u32 v4, s{sT0}, v4")
    for t in range(2):
        E(f"v_add_u32 v5, {2*t}, v4")
        E(f"v_xor_b32 v5, v5, v3")
        E(f"v_lshl_add_u32 v{vAA+t}, v5, 4, v2")
    E(f"v_lshrrev_b32 v2, 5, v{vLANE}")
    E(f"v_lshlrev_b32 v2, 2, v2")
    E(f"v_bfe_u32 v3, v{vLANE}, 2, 2")
    E(f"v_add_u32 v2, v2, v3")
    E(f"s_lshl_b32 s{sT0}, s{sKH}, 5")
    E(f"v_add_u32 v2, s{sT0}, v2")
    E(f"v_lshlrev_b32 v2, 7, v2")
    E(f"v_and_b32 v4, 1, v{vLANE}")
    E(f"v_lshl_add_u32 v2, v4, 3, v2")
    E(f"v_add_u32 v2, {AB}, v2")
    E(f"v_bfe_u32 v4, v{vLANE}, 4, 1")
    E(f"v_lshlrev_b32 v4, 1, v4")
    E(f"v_bfe_u32 v5, v{vLANE}, 1, 1")
    E(f"v_add_u32 v4, v4, v5")
    E(f"s_lshr_b32 s{sT0}, s{sWQ}, 1")
    E(f"s_lshl_b32 s{sT0}, s{sT0}, 2")
    E(f"v_add_u32 v4, s{sT0}, v4")
    E(f"v_lshlrev_b32 v3, 1, v3")
    E(f"v_and_b32 v3, 4, v3")
    E(f"v_xor_b32 v4, v4, v3")
    E(f"v_lshl_add_u32 v{vBA}, v4, 4, v2")
    for i in range(32):
        E(f"v_mov_b32 v{vACC1+i}, 0")
    def frag_reads(t, buf):
        E(f"ds_read_b128 v[{vAF+4*buf}:{vAF+4*buf+3}], v{vAA+t}")
        for e in range(2):
            off = (16 * t + 8 * e) * 128
            d = vBF + 4 * buf + 2 * e
            E(f"ds_read_b64_tr_b16 v[{d}:{d+1}], v{vBA} offset:{off}")
    def bump(st):
        delta = SLOT if (st % NS) != 0 else -(NS - 1) * SLOT
        for r in [vAA, vAA + 1, vBA]:
            if delta > 0:
                E(f"v_add_u32 v{r}, {delta}, v{r}")
            else:
                E(f"v_subrev_u32 v{r}, {-delta}, v{r}")
    vm.wait(0)
    E("s_barrier")
    E.stamp()
    frag_reads(0, 0)
    for st in range(NST):
        acc = vACC1 if st < 8 else vACC2
        lastst = (st == NST - 1)
        if lastst:
            E(f"s_cmp_lg_u32 s{sKH}, 0")
            E("s_cbranch_scc1 K3_SKIPLAST")
        frag_reads(1, 1)
        E("s_waitcnt lgkmcnt(3)")
        E(f"v_mfma_f32_32x32x16_bf16 v[{acc}:{acc+15}], v[{vBF}:{vBF+3}], v[{vAF}:{vAF+3}], v[{acc}:{acc+15}]")
        if not lastst:
            vm.wait(st + 1)
            E("s_barrier")
            if st + 1 in (1, 2, 4, 8, 12, 16, 20, 24, 29): E.stamp()
            for _ in range(2):
                if nxt_issue < NST and nxt_issue <= st + PD:
                    issue_stage(nxt_issue); nxt_issue += 1
            bump(st + 1)
            frag_reads(0, 0)
            E("s_waitcnt lgkmcnt(3)")
        else:
            E("s_waitcnt lgkmcnt(0)")
        E(f"v_mfma_f32_32x32x16_bf16 v[{acc}:{acc+15}], v[{vBF+4}:{vBF+7}], v[{vAF+4}:{vAF+7}], v[{acc}:{acc+15}]")
        if lastst:
            E.label("K3_SKIPLAST")
            E("s_waitcnt lgkmcnt(0)")
    E("s_nop 15")
    E("s_barrier")
    E(f"v_lshlrev_b32 v2, 4, v{vLANE}")
    E(f"s_lshl_b32 s{sT0}, s{sWQ}, 13")
    E(f"v_add_u32 v2, s{sT0}, v2")
    E(f"s_cmp_eq_u32 s{sKH}, 0")
    E("s_cbranch_scc1 K3_RD")
    for i in range(8):
        E(f"ds_write_b128 v2, v[{vACC1+4*i}:{vACC1+4*i+3}] offset:{1024*i}")
    E("s_waitcnt lgkmcnt(0)")
    E("s_barrier")
    E("s_branch K3_END")
    E.label("K3_RD")
    E("s_barrier")
    for i in range(8):
        E(f"ds_read_b128 v[{vT+16+4*i}:{vT+16+4*i+3}], v2 offset:{1024*i}")
    E("s_waitcnt lgkmcnt(0)")
    for i in range(0, 32, 2):
        E(f"v_pk_add_f32 v[{vACC1+i}:{vACC1+i+1}], v[{vACC1+i}:{vACC1+i+1}], v[{vT+16+i}:{vT+16+i+1}]")
    E.stamp()
    E(f"v_sub_f32 v{vT}, 1.0, v{vG}")
    E(f"v_cvt_pk_bf16_f32 v{vT}, v{vT}, v{vT}")
    E(f"v_lshlrev_b32 v{vT}, 16, v{vT}")
    def rnd_pair(r):
        E(f"v_cvt_pk_bf16_f32 v{vT+1}, v{r}, v{r+1}")
        E(f"v_lshlrev_b32 v{r}, 16, v{vT+1}")
        E(f"v_and_b32 v{r+1}, 0xffff0000, v{vT+1}")
    for i in range(0, 16, 2):
        rnd_pair(vACC1 + i); rnd_pair(vACC2 + i)
        E(f"v_mul_f32 v{vACC1+i}, v{vG}, v{vACC1+i}")
        E(f"v_mul_f32 v{vACC1+i+1}, v{vG}, v{vACC1+i+1}")
        E(f"v_mul_f32 v{vACC2+i}, v{vT}, v{vACC2+i}")
        E(f"v_mul_f32 v{vACC2+i+1}, v{vT}, v{vACC2+i+1}")
        rnd_pair(vACC1 + i); rnd_pair(vACC2 + i)
        E(f"v_add_f32 v{vACC1+i}, v{vACC1+i}, v{vACC2+i}")
        E(f"v_add_f32 v{vACC1+i+1}, v{vACC1+i+1}, v{vACC2+i+1}")
        E(f"v_cvt_pk_bf16_f32 v{vT+4+i//2}, v{vACC1+i}, v{vACC1+i+1}")
    E(f"v_and_b32 v2, 31, v{vLANE}")
    E(f"v_lshrrev_b32 v3, 5, v{vLANE}")
    E(f"v_lshlrev_b32 v2, 10, v2")
    E(f"v_lshl_add_u32 v2, v3, 3, v2")
    E(f"s_lshl_b32 s{sT0}, s{sROW}, 10")
    E(f"s_lshl_b32 s{sT1}, s{sNT}, 7")
    E(f"s_add_u32 s{sT0}, s{sT0}, s{sT1}")
    E(f"s_lshr_b32 s{sT1}, s{sWQ}, 1")
    E(f"s_lshl_b32 s{sT1}, s{sT1}, 6")
    E(f"s_add_u32 s{sT0}, s{sT0}, s{sT1}")
    for q in range(4):
        E(f"buffer_store_dwordx2 v[{vT+4+2*q}:{vT+5+2*q}], v2, s[{S_OUT}:{S_OUT+3}], s{sT0} offen offset:{16*q}")
    E.stamp()
    E.dump_stamps(S_WS, sW, 2)
    E.label("K3_END")
    E("s_endpgm")
    return name, 128

def main():
    hdr = open(f"cdna_kernels/{NAME}.s.ref").read().split("\n")
    head = [l for l in hdr if l.startswith(";") and "@launch" not in l]
    E = Asm()
    k1, v1 = gen_k1(E)
    k2, v2 = gen_k2(E)
    k3, v3 = gen_k3(E)
    out = "\n".join(head) + "\n"
    out += f"; @launch kernel={k1} grid=(256,1,1) block=(256,1,1) lds=143360\n"
    out += f"; @launch kernel={k2} grid=(256,1,1) block=(768,1,1) lds=155648\n"
    out += f"; @launch kernel={k3} grid=(256,1,1) block=(512,1,1) lds={9*16384}\n"
    out += '.amdgcn_target "amdgcn-amd-amdhsa--gfx950"\n.text\n'
    out += E.text()
    out += '.section .rodata,"a"\n'
    out += kernel_desc(k1, v1) + kernel_desc(k2, v2) + kernel_desc(k3, v3)
    open(OUT, "w").write(out)
    print("wrote", OUT, len(out))

if __name__ == "__main__":
    main()
```
